```python
import torch

def _softmax(x, axis=-1):
    return torch.softmax(x, dim=axis)
def _gelu(x):
    return torch.nn.functional.gelu(x, approximate="tanh")
def _silu(x):
    return torch.nn.functional.silu(x)
def _sigmoid(x):
    return torch.sigmoid(x)
def _layernorm(x, axis=-1, eps=1e-5):
    m = x.mean(dim=axis, keepdim=True)
    v = x.var(dim=axis, keepdim=True, unbiased=False)
    return (x - m) / torch.sqrt(v + eps)
def _scatter_add(tgt, idx, src, axis=0):
    return tgt.clone().index_add_(axis, idx, src)
def _segment_sum(src, seg, n):
    out = torch.zeros((n,) + src.shape[1:], dtype=src.dtype)
    return out.index_add_(0, seg, src)
def _pad(x, pw):
    flat = tuple(v for pair in reversed(pw) for v in pair)
    return torch.nn.functional.pad(x, flat)

kernel_name = 'concat_heads__sliding_block_cached__gqa_block_cached__decode'

def setup_inputs():

    _w = (lambda a: (lambda t: t.to(torch.bfloat16) if t.is_floating_point() else t)(torch.as_tensor(a)))
    def _A_setup():
        B, Sq, D = 8, 1, 512
        Hq, Hkv, Sk, Dh = 32, 8, 4096, 128
        assert Hq % Hkv == 0, (Hq, Hkv)
        return {
            "x": _w((lambda *s: torch.randn(*s, dtype=torch.bfloat16) * 0.8)(B, Sq, D)),
            "k_cache": _w((lambda *s: torch.randn(*s, dtype=torch.bfloat16) * 1.6)(B, Hkv, Sk, Dh)),
            "v_cache": _w((lambda *s: torch.randn(*s, dtype=torch.bfloat16) * 0.2)(B, Hkv, Sk, Dh)),
            "wq": _w((lambda *s: torch.randn(*s, dtype=torch.bfloat16) * 1.6)(D, Hq * Dh) * (D ** -0.5)),
            "wo": _w((lambda *s: torch.randn(*s, dtype=torch.bfloat16) * 0.2)(Hq * Dh, D) * ((Hq * Dh) ** -0.5)),
        }
    _A_in = _A_setup()

    def _B_setup():
        B, Sq, D = 8, 1, 512
        Hq, Hkv, Sk, Dh = 32, 8, 4096, 128
        assert Hq % Hkv == 0, (Hq, Hkv)
        return {
            "x": _w((lambda *s: torch.randn(*s, dtype=torch.bfloat16) * 0.8)(B, Sq, D)),
            "k_cache": _w((lambda *s: torch.randn(*s, dtype=torch.bfloat16) * 1.6)(B, Hkv, Sk, Dh)),
            "v_cache": _w((lambda *s: torch.randn(*s, dtype=torch.bfloat16) * 0.2)(B, Hkv, Sk, Dh)),
            "wq": _w((lambda *s: torch.randn(*s, dtype=torch.bfloat16) * 1.6)(D, Hq * Dh) * (D ** -0.5)),
            "wo": _w((lambda *s: torch.randn(*s, dtype=torch.bfloat16) * 0.2)(Hq * Dh, D) * ((Hq * Dh) ** -0.5)),
        }
    _B_in = _B_setup()

    return {
        "A_x": _A_in["x"],
        "A_k_cache": _A_in["k_cache"],
        "A_v_cache": _A_in["v_cache"],
        "A_wq": _A_in["wq"],
        "A_wo": _A_in["wo"],
        "B_x": _B_in["x"],
        "B_k_cache": _B_in["k_cache"],
        "B_v_cache": _B_in["v_cache"],
        "B_wq": _B_in["wq"],
        "B_wo": _B_in["wo"],
    }

def reference(A_x, A_k_cache, A_v_cache, A_wq, A_wo, B_x, B_k_cache, B_v_cache, B_wq, B_wo):
    def _A_ref(x, k_cache, v_cache, wq, wo):
        B, Sq, D = x.shape
        Hq, Dh = 32, 128
        Hkv, Sk = k_cache.shape[1], k_cache.shape[2]
        W = min(4096, max(256, Sk // 4))
        rep = Hq // Hkv
        q = (lambda x, *d: x.permute(*d))((x @ wq).reshape(B, Sq, Hq, Dh), 0, 2, 1, 3)
        k = (lambda x, n, axis: torch.repeat_interleave(x, n, dim=axis))(k_cache[:, :, Sk - W:, :], rep, axis=1)
        v = (lambda x, n, axis: torch.repeat_interleave(x, n, dim=axis))(v_cache[:, :, Sk - W:, :], rep, axis=1)
        scores = torch.einsum("bhqd,bhkd->bhqk", q, k) * (Dh ** -0.5)
        p = _softmax(scores, axis=-1)
        o = torch.einsum("bhqk,bhkd->bhqd", p, v)
        return (lambda x, *d: x.permute(*d))(o, 0, 2, 1, 3).reshape(B, Sq, Hq * Dh) @ wo

    def _B_ref(x, k_cache, v_cache, wq, wo):
        B, Sq, D = x.shape
        Hq, Dh = 32, 128
        Hkv = k_cache.shape[1]
        rep = Hq // Hkv
        q = (lambda x, *d: x.permute(*d))((x @ wq).reshape(B, Sq, Hq, Dh), 0, 2, 1, 3)
        k = (lambda x, n, axis: torch.repeat_interleave(x, n, dim=axis))(k_cache, rep, axis=1)
        v = (lambda x, n, axis: torch.repeat_interleave(x, n, dim=axis))(v_cache, rep, axis=1)
        scores = torch.einsum("bhqd,bhkd->bhqk", q, k) * (Dh ** -0.5)
        p = _softmax(scores, axis=-1)
        o = torch.einsum("bhqk,bhkd->bhqd", p, v)
        return (lambda x, *d: x.permute(*d))(o, 0, 2, 1, 3).reshape(B, Sq, Hq * Dh) @ wo

    a = _A_ref(A_x, A_k_cache, A_v_cache, A_wq, A_wo)
    b = _B_ref(B_x, B_k_cache, B_v_cache, B_wq, B_wo)
    return torch.concatenate([a, b], axis=-1)
```

```python
import re

def _regs(tok):
    tok = tok.strip()
    tok = tok.lstrip('-')
    if tok.startswith('abs(') or tok.startswith('|'):
        tok = tok.strip('|').replace('abs(', '').rstrip(')')
    m = re.fullmatch(r'([vas])(\d+)', tok)
    if m: return {(m.group(1), int(m.group(2)))}
    m = re.fullmatch(r'([vas])\[(\d+):(\d+)\]', tok)
    if m: return {(m.group(1), i) for i in range(int(m.group(2)), int(m.group(3)) + 1)}
    if tok == 'vcc': return {('s', 'vcc')}
    if tok == 'exec': return {('s', 'exec')}
    if tok == 'm0': return {('s', 'm0')}
    return set()

TRANS = ('v_exp_f32', 'v_log_f32', 'v_rcp_f32', 'v_rsq_f32', 'v_sqrt_f32')

class Ins:
    def __init__(self, text):
        self.text = text
        t = text.split(';')[0].strip()
        self.label = t.endswith(':')
        self.directive = t.startswith('.')
        self.empty = not t
        self.op = t.split()[0] if t and not self.label else ''
        rest = t[len(self.op):].strip() if self.op else ''
        ops = [o.strip() for o in rest.split(',')] if rest else []
        self.mods = ''
        if ops:
            parts = ops[-1].split()
            ops[-1] = parts[0]
            self.mods = ' '.join(parts[1:])
        self.ops = ops
        op = self.op
        self.mfma = op.startswith('v_mfma')
        self.valu = op.startswith('v_') and not self.mfma
        self.vmem = op.startswith('buffer_') or op.startswith('global_')
        self.ds = op.startswith('ds_')
        self.salu = op.startswith('s_')
        self.dpp = '_dpp' in op or 'row_' in self.mods or 'quad_perm' in self.mods
        self.permlane = op.startswith('v_permlane')
        self.trans = any(op.startswith(x) for x in TRANS)
        self.readlane = op.startswith('v_readfirstlane') or op.startswith('v_readlane')
        R = [_regs(o) for o in ops]
        w, r = set(), set()
        self.srcC = set(); self.storedata = set()
        if self.mfma:
            w = R[0]; r = R[1] | R[2] | R[3]; self.srcC = R[3]; self.srcAB = R[1] | R[2]
        elif self.permlane:
            w = R[0] | R[1]; r = R[0] | R[1]
        elif self.valu:
            w = R[0]; r = set().union(*R[1:]) if len(R) > 1 else set()
            if op.startswith('v_fmac') or self.dpp: r |= R[0]
            if op.startswith('v_cmpx'): w |= {('s', 'exec')}
            if op.startswith('v_cndmask') and len(ops) == 3: r |= {('s', 'vcc')}
        elif self.vmem:
            if 'store' in op:
                r = set().union(*R)
                d = R[0] if op.startswith('buffer_') else R[1]
                if 'x4' in op or 'x3' in op: self.storedata = d
            elif ' lds' in ' ' + self.mods:
                r = set().union(*R) | {('s', 'm0')}
            elif op in ('buffer_inv', 'buffer_wbl2'):
                pass
            else:
                w = R[0]; r = set().union(*R[1:])
        elif self.ds:
            if 'read' in op or 'bpermute' in op: w = R[0]; r = set().union(*R[1:])
            else: r = set().union(*R)
        elif self.salu:
            if op.startswith('s_cmp') or op.startswith('s_cbranch') or op in ('s_waitcnt', 's_nop', 's_barrier', 's_branch', 's_endpgm', 's_sleep', 's_setprio'):
                r = set().union(*R) if R else set()
            else:
                w = R[0] if R else set(); r = set().union(*R[1:]) if len(R) > 1 else set()
        self.w, self.r = w, r
    def states(self):
        if self.label or self.directive or self.empty: return 0
        if self.op == 's_nop': return int(self.ops[0], 0) + 1
        return 1

def need(p, c):
    n = 0
    vw = {x for x in p.w if x[0] in 'va'}
    sw = {x for x in p.w if x[0] == 's'}
    if p.valu:
        if c.mfma and vw & c.r: n = max(n, 2)
        if c.valu and c.dpp and vw & c.r: n = max(n, 2)
        if c.permlane and vw & c.r: n = max(n, 2)
        if c.readlane and vw & c.r: n = max(n, 1)
        if p.trans and c.valu and not c.trans and vw & c.r: n = max(n, 1)
        if p.trans and c.mfma and vw & c.r: n = max(n, 2)
        if sw & c.r:
            if c.valu: n = max(n, 2)
            if c.vmem: n = max(n, 5)
            if c.salu: n = max(n, 1)
        if ('s', 'exec') in sw:
            if c.dpp: n = max(n, 5)
            if c.mfma or c.permlane or c.readlane: n = max(n, 4)
        if ('s', 'vcc') in sw and c.op.startswith('s_cbranch_vcc'): n = max(n, 1)
    if p.mfma:
        passes = 4 if '16x16' in p.op else 8
        big = {4: 8, 8: 12}[passes]
        if c.mfma:
            if p.w & c.srcAB: n = max(n, big)
            if p.w & c.srcC and not (c.srcC == p.w and c.op == p.op): n = max(n, passes + 2)
            if p.w & c.w and not (c.srcC == p.w): n = max(n, big)
        elif c.valu or c.vmem or c.ds:
            if p.w & (c.r | c.w): n = max(n, big)
        if c.valu and p.srcC & c.w: n = max(n, passes - 1)
    if p.storedata and p.storedata & c.w: n = max(n, 2)
    if p.salu and ('s', 'm0') in p.w and ('s', 'm0') in c.r: n = max(n, 1)
    return n

def finalize(lines):
    out = []
    for t in lines:
        c = Ins(t)
        if not (c.label or c.directive or c.empty):
            dist = 0; req = 0
            for p in reversed(out[-40:]):
                if dist >= 20: break
                if not (p.label or p.directive or p.empty):
                    req = max(req, need(p, c) - dist)
                dist += p.states()
            while req > 0:
                k = min(req, 16)
                out.append(Ins(f"s_nop {k-1}")); req -= k
        out.append(c)
    return [("" if (i.label or i.directive) else "    ") + i.text for i in out]
```

```python
import sys, struct
from asmlib import finalize
NAME = "concat_heads__sliding_block_cached__gqa_block_cached__decode"
HEADER = open("cdna_kernels/" + NAME + ".s.ref").read().split("; Override launch geometry")[0]

def f32(x): return struct.unpack("<I", struct.pack("<f", x))[0]

WS_E, WS_Q, WS_ML, WS_O1, WS_P2 = 0, 0x10000, 0x60000, 0x80000, 0x200000
WS_BYTES = 285229056
L_QP, L_M, L_L, L_OA, L_OB, L_O = 0x0, 0x2000, 0x2080, 0x2100, 0x4200, 0x6300
OW, OH = 2112, 528
LDS_BYTES = 0x7000
S_WG, S_WAVE = 2, 3
SRD_KB, SRD_KA, SRD_VA, SRD_VB, SRD_WQ, SRD_X, SRD_WO, SRD_WS, SRD_OUT = 32, 36, 40, 44, 48, 52, 56, 60, 64
S_BR, S_KVH, S_B, S_S, S_HEAD = 5, 9, 12, 11, 13
S_SOFF = 14
S_T = 15
S_T2 = 4
S_SELLO, S_SELHI = 16, 17
S_TAG = 18
S_INS = 22
S_C = 26
S_CNT = 27
S_C20000, S_C40000, S_C60000, S_C80000 = 28, 29, 30, 31
S_MASK = 68
S_PC = 70
S_STAMP = 72
V_L, V_K, V_V, V_TAG = 0, 1, 2, 3
V_T0 = 4
QA, QB, DT, SA, SB, OACC, RING, VT = 16, 24, 32, 48, 64, 96, 128, 16
LA, LB = 56, 60
def srd(n): return f"s[{n}:{n+3}]"
def vr(n, k=4): return f"v[{n}:{n+k-1}]"
def ar(n, k=4): return f"a[{n}:{n+k-1}]"

class Sched:
    def __init__(self, out, F, CAP):
        self.out, self.F, self.CAP = out, F, CAP
        self.issued = 0
        self.landed = 0
        self.seq = {}
        self.marks = set()
        self.comp = []
        self.loads = []
    def c(self, lines, need=(), mark=None):
        if isinstance(lines, str): lines = [lines]
        if isinstance(need, str): need = (need,)
        self.comp.append((lines, tuple(need), mark))
    def ld(self, text, name=None, pre=(), after=None, F=None):
        self.loads.append((text, name, tuple(pre), after, F))
    def wait_landed(self, n):
        if n > self.landed:
            k = self.issued - n
            assert k >= 0
            self.out.append(f"s_waitcnt vmcnt({min(k, 63)})")
            self.landed = max(n, self.issued - min(k, 63))
    def ready(self, item):
        return all(nm in self.seq and self.seq[nm] <= self.landed for nm in item[1])
    def emit_comp(self, force=False):
        lines, need, mark = self.comp.pop(0)
        for nm in need:
            assert nm in self.seq, f"compute needs load {nm} not issued yet"
            self.wait_landed(self.seq[nm])
        self.out.extend(lines)
        if mark: self.marks.add(mark)
        return len(lines)
    def run(self):
        for idx, (text, name, pre, after, F) in enumerate(self.loads):
            while after and after not in self.marks:
                self.emit_comp()
            F = self.F if F is None else F
            self.out.extend(pre)
            self.wait_landed(max(0, self.issued - (F - 1)))
            self.out.append(text)
            self.issued += 1
            if name: self.seq[name] = self.issued
            n = 0
            if idx + 1 < len(self.loads):
                Fn = self.loads[idx + 1][4]
                Fn = self.F if Fn is None else Fn
                if self.issued - self.landed < Fn: continue
            while self.comp and n < self.CAP and self.ready(self.comp[0]):
                n += self.emit_comp()
        self.loads = []
        while self.comp: self.emit_comp()

def check_block(regs, tmp, retry):
    o = []; acc = []
    t = tmp
    assert len(regs) % 2 == 0
    for a, b in zip(regs[0::2], regs[1::2]):
        for k in range(4):
            o.append(f"v_bitop3_b32 v{t}, v{a+k}, v{b+k}, s{S_TAG+k} bitop3:0x7e"); acc.append(t); t += 1
            if len(acc) == 3:
                o.append(f"v_or3_b32 v{acc[0]}, v{acc[0]}, v{acc[1]}, v{acc[2]}"); acc = [acc[0]]; t = acc[0] + 1
    if len(acc) == 2: o.append(f"v_or_b32 v{acc[0]}, v{acc[0]}, v{acc[1]}")
    o.append(f"v_and_b32 v{acc[0]}, 0xff, v{acc[0]}")
    o.append(f"v_cmp_ne_u32 vcc, 0, v{acc[0]}")
    o.append(f"s_cbranch_vccnz {retry}")
    return o

def gen(F=6, CAP=24, stamps=False, qpoll_at=44, wq_at=6, Fwo=40, Fend=None, pol="nt", wpol="nt", mlpoll_at=52):
    O = []; A = O.append
    tail_code = []
    nst = [0]
    def stamp():
        if not stamps: return []
        i = nst[0]; nst[0] += 1
        return [f"s_memrealtime s[{S_STAMP+2*i}:{S_STAMP+2*i+1}]"]
    A(f"{NAME}_kernel:")
    A("s_cmp_ge_u32 s2, 256"); A("s_cbranch_scc1 L_end")
    A(f"s_load_dwordx2 s[{SRD_KB}:{SRD_KB+1}], s[0:1], 48")
    A(f"s_load_dwordx2 s[{SRD_WS}:{SRD_WS+1}], s[0:1], 96")
    A(f"s_lshr_b32 s{S_BR}, s2, 7"); A(f"s_mul_i32 s6, s{S_BR}, 40")
    A(f"s_load_dwordx2 s[{SRD_X}:{SRD_X+1}], s[0:1], s6")
    A(f"s_load_dwordx2 s[{SRD_WQ}:{SRD_WQ+1}], s[0:1], s6 offset:24")
    A(f"s_load_dwordx2 s[{SRD_WO}:{SRD_WO+1}], s[0:1], s6 offset:32")
    A(f"s_load_dwordx2 s[{SRD_KA}:{SRD_KA+1}], s[0:1], 8")
    A(f"s_load_dwordx2 s[{SRD_VA}:{SRD_VA+1}], s[0:1], 16")
    A(f"s_load_dwordx2 s[{SRD_VB}:{SRD_VB+1}], s[0:1], 56")
    A(f"s_load_dwordx2 s[{SRD_OUT}:{SRD_OUT+1}], s[0:1], 80")
    O.extend(stamp())
    A("v_lshrrev_b32 v4, 6, v0"); A("v_and_b32 v0, 63, v0"); A(f"v_readfirstlane_b32 s{S_WAVE}, v4")
    A("v_bfe_u32 v5, v0, 1, 1"); A("v_bfe_u32 v6, v0, 2, 2"); A("v_lshlrev_b32 v5, 10, v5"); A("v_lshl_or_b32 v5, v6, 8, v5")
    A("v_lshrrev_b32 v6, 4, v0"); A("v_lshl_or_b32 v5, v6, 5, v5"); A("v_and_b32 v7, 1, v0"); A("v_lshl_or_b32 v5, v7, 4, v5")
    A(f"s_lshr_b32 s{S_B}, s2, 5"); A(f"s_lshl_b32 s8, s{S_B}, 23"); A(f"s_and_b32 s{S_KVH}, s2, 7"); A(f"s_lshl_b32 s10, s{S_KVH}, 20"); A("s_or_b32 s8, s8, s10")
    A(f"s_bfe_u32 s{S_S}, s2, 0x20003"); A(f"s_lshl_b32 s10, s{S_S}, 14"); A("s_or_b32 s8, s8, s10"); A(f"s_lshl_b32 s10, s{S_WAVE}, 12"); A("s_or_b32 s8, s8, s10")
    A(f"s_mov_b32 s{SRD_KB+2}, 0x4000000"); A(f"s_mov_b32 s{SRD_KB+3}, 0x20000")
    A(f"v_add_u32 v{V_K}, s8, v5"); A(f"v_lshl_add_u32 v{V_V}, v0, 4, s8")
    A("s_waitcnt lgkmcnt(0)")

    S = Sched(O, F, CAP)
    KOFF = [0, 128, 2048, 2176]
    kl = []
    for T in range(8):
        for i in range(8):
            m = 2 * T + i // 4
            pre = [f"s_mov_b32 s{S_SOFF}, {m*65536}"] if (i % 4 == 0 and m) else []
            so = f"s{S_SOFF}" if m else "0"
            kl.append(dict(text=f"buffer_load_dwordx4 {ar(32*T+4*i)}, v{V_K}, {srd(SRD_KB)}, {so} offen offset:{KOFF[i%4]} {pol}", name=f"KB{T}_{i}", pre=pre))
    for T in range(2):
        for i in range(8):
            m = 2 * T + i // 4
            pre = [f"s_mov_b32 s{S_SOFF}, {3072*256 + m*65536}"] if i % 4 == 0 else []
            kl.append(dict(text=f"buffer_load_dwordx4 {vr(RING+64+32*T+4*i)}, v{V_K}, {srd(SRD_KA)}, s{S_SOFF} offen offset:{KOFF[i%4]} {pol}", name=f"KA{T}_{i}", pre=pre, after="setup"))
    WQD, XD, WQT, QD = 128, 160, 64, 96
    V_WQ, V_X = 8, 9
    wql = []
    for G in range(2):
        wql.append(dict(text=f"buffer_load_dwordx4 {vr(XD+4*G)}, v{V_X}, {srd(SRD_X)}, 0 offen offset:{128*G}", name=f"X{G}", after="setup", F=64))
        for t in range(8):
            wql.append(dict(text=f"buffer_load_dwordx2 {vr(WQD+16*G+2*t,2)}, v{V_WQ}, {srd(SRD_WQ)}, s{S_T2} offen {wpol}", name=f"WQ{G}_{t}",
                            pre=[f"s_mov_b32 s{S_T2}, {(64*G+t)*8192}"], F=64))
    wql.append(dict(text=f"global_load_dword v168, v10, s[{S_PC}:{S_PC+1}]", F=64))
    V_QP = 11
    QP = 128
    def qpoll_loads():
        r = []
        for br in range(2):
            for Lh in range(4):
                so = f"s{S_C20000}" if br else "0"
                r.append(f"buffer_load_dwordx4 {vr(QP+16*br+4*Lh)}, v{V_QP}, {srd(SRD_WS)}, {so} offen offset:{(Lh//2)*256+(Lh%2)*16} sc1")
        return r
    qpl = [dict(text=t, name=f"QP{i}", after="qproj_done", F=F+8) for i, t in enumerate(qpoll_loads())]
    stream = kl[:wq_at] + wql + kl[wq_at:qpoll_at] + qpl + kl[qpoll_at:]
    vl = []
    for n in range(10):
        for t in range(8):
            br, T = (0, n) if n < 2 else (1, n - 2)
            m = 2 * T + t // 4
            off = m * 65536 + (3072 * 256 if br == 0 else 0)
            pre = [f"s_mov_b32 s{S_SOFF}, {off}"] if t % 4 == 0 else []
            after = {0: "q_packed", 1: "q_packed", 2: "qkA0", 3: "qkA1"}.get(n, f"perm{n-4}_{t//2}")
            vl.append(dict(text=f"buffer_load_dwordx4 {vr(RING+32*(n%4)+4*t)}, v{V_V}, {srd(SRD_VB if br else SRD_VA)}, s{S_SOFF} offen offset:{(t%4)*1024} {pol}",
                           name=f"V{n}_{t}", pre=pre, after=after))
    if Fend:
        for d in vl[-Fend[0]:]: d["F"] = Fend[1]
    MLR = 48
    V_ML, V_O1C, V_WO, V_P2S, V_P2L, V_OUT = 12, 13, 14, 15, 8, 9
    def ml_loads():
        return [f"buffer_load_dwordx4 {vr(MLR+4*s)}, v{V_ML}, {srd(SRD_WS)}, 0 offen offset:{16*s} sc1" for s in range(4)]
    mll = [dict(text=t, name=f"ML{i}", after="pubA", F=F+4) for i, t in enumerate(ml_loads())]
    mll.append(dict(text=f"buffer_load_dword a0, v{V_P2L}, {srd(SRD_WS)}, 0 offen sc1", F=F+5))
    mll.append(dict(text=f"buffer_load_ushort a1, v{V_OUT}, {srd(SRD_OUT)}, 0 offen", F=F+6))
    WOD = RING + 64
    wol = []
    for kc in range(4):
        for t4 in range(4):
            for th in range(2):
                t = th * 4 + t4
                pre = [f"s_mov_b32 s{S_SOFF}, {(32*kc+8*t4)*1024}"] if th == 0 else []
                wol.append(dict(text=f"buffer_load_dword v{WOD+8*kc+t}, v{V_WO}, {srd(SRD_WO)}, s{S_SOFF} offen offset:{th*1024} {wpol}", name=f"WO{kc}_{t}",
                                pre=pre, after="perm6_3", F=Fwo))
    stream += vl[:mlpoll_at] + mll + vl[mlpoll_at:] + wol
    for d in stream: S.ld(**d)

    c = S.c
    for n, sz in ((SRD_KA, 0x4000000), (SRD_VA, 0x4000000), (SRD_VB, 0x4000000), (SRD_WQ, 0x400000), (SRD_X, 8192), (SRD_WO, 0x400000), (SRD_WS, WS_BYTES), (SRD_OUT, 16384)):
        c(f"s_mov_b32 s{n+2}, {sz}"); c(f"s_mov_b32 s{n+3}, 0x20000")
    c(f"s_load_dword s{S_TAG}, s[{SRD_WS}:{SRD_WS+1}], {WS_E}")
    c("v_bfe_u32 v7, v0, 3, 3")
    c("v_and_b32 v5, 7, v0")
    c(f"s_bfe_u32 s{S_T}, s2, 0x40003")
    c(f"s_lshl_b32 s10, s{S_T}, 6"); c(f"s_lshl_b32 s8, s{S_KVH}, 10"); c("s_or_b32 s10, s10, s8"); c(f"s_lshl_b32 s8, s{S_WAVE}, 20"); c("s_or_b32 s10, s10, s8")
    c(f"v_lshlrev_b32 v{V_WQ}, 16, v7"); c(f"v_lshl_or_b32 v{V_WQ}, v5, 3, v{V_WQ}"); c(f"v_add_u32 v{V_WQ}, s10, v{V_WQ}")
    c(f"s_lshl_b32 s8, s{S_WAVE}, 8")
    c(f"v_lshlrev_b32 v{V_X}, 10, v5"); c(f"v_lshl_or_b32 v{V_X}, v7, 4, v{V_X}"); c(f"v_add_u32 v{V_X}, s8, v{V_X}")
    c([f"s_getpc_b64 s[{S_PC}:{S_PC+1}]", "L_pc:"])
    c("v_lshlrev_b32 v10, 6, v0"); c(f"s_lshl_b32 s8, s{S_WAVE}, 12"); c("v_add_u32 v10, s8, v10")
    c("v_min_u32 v10, L_code_end-L_pc-4, v10", mark="setup")
    c(f"s_mov_b32 s{S_SELLO}, 0x05040100"); c(f"s_mov_b32 s{S_SELHI}, 0x07060302")
    for k in range(4): c(f"s_mov_b32 s{S_INS+k}, {0x07060500 + k:#x}")
    c(f"s_mov_b32 s{S_C}, {f32((128 ** -0.5) * 1.4426950408889634):#x}")
    c(f"s_mov_b32 s{S_CNT}, 40000")
    c(f"s_mov_b32 s{S_C20000}, 0x20000"); c(f"s_mov_b32 s{S_C40000}, 0x40000"); c(f"s_mov_b32 s{S_C60000}, 0x60000"); c(f"s_mov_b32 s{S_C80000}, 0x80000")
    c(f"s_bfe_u32 s8, s2, 0x20005"); c(f"s_lshl_b32 s{S_HEAD}, s{S_KVH}, 2"); c(f"s_or_b32 s{S_HEAD}, s{S_HEAD}, s8")
    c(f"s_lshl_b32 s8, s{S_B}, 3"); c(f"s_or_b32 s8, s8, s{S_KVH}"); c("s_lshl_b32 s8, s8, 11"); c(f"s_add_u32 s8, s8, {WS_Q}")
    c("v_and_b32 v4, 3, v0"); c(f"v_lshlrev_b32 v{V_QP}, 9, v4"); c(f"v_lshl_or_b32 v{V_QP}, v6, 6, v{V_QP}")
    c("v_bfe_u32 v4, v0, 2, 1"); c(f"v_lshl_or_b32 v{V_QP}, v4, 5, v{V_QP}"); c(f"v_add_u32 v{V_QP}, s8, v{V_QP}")
    c("v_bfe_u32 v4, v0, 3, 1"); c("v_lshlrev_b32 v12, 10, v4"); c("v_bfe_u32 v4, v0, 4, 1"); c("v_lshl_or_b32 v12, v4, 9, v12"); c("v_lshl_or_b32 v12, v5, 4, v12")
    c(f"s_lshl_b32 s8, s{S_WAVE}, 11"); c("v_add_u32 v12, s8, v12")
    c(f"s_lshl_b32 s8, s{S_BR}, 17"); c(f"s_lshl_b32 s10, s{S_KVH}, 11"); c("s_or_b32 s8, s8, s10"); c(f"s_lshl_b32 s10, s{S_T}, 7"); c("s_or_b32 s8, s8, s10"); c(f"s_add_u32 s8, s8, {WS_Q}")
    c("v_lshlrev_b32 v13, 14, v7"); c("v_lshl_or_b32 v13, v5, 4, v13"); c("v_add_u32 v13, s8, v13")
    c("v_lshlrev_b32 v14, 4, v0")
    c(["s_waitcnt lgkmcnt(0)", f"s_add_u32 s{S_TAG}, s{S_TAG}, 0x9E3779B1"], need="X0")
    for k in range(1, 4): c(f"s_lshr_b32 s{S_TAG+k}, s{S_TAG}, {8*k}")
    c(f"v_mov_b32 v{V_TAG}, s{S_TAG}")
    for G in range(2):
        for p in range(4):
            for e in range(4):
                sel = S_SELHI if e & 1 else S_SELLO
                c(f"v_perm_b32 v{WQT+16*G+4*e+p}, v{WQD+16*G+2*(2*p+1)+e//2}, v{WQD+16*G+2*(2*p)+e//2}, s{sel}", need=(f"WQ{G}_{2*p+1}",))
        for e in range(4):
            cc = "0" if G == 0 else vr(QD + 4 * e)
            c(f"v_mfma_f32_16x16x32_bf16 {vr(QD+4*e)}, {vr(XD+4*G)}, {vr(WQT+16*G+4*e)}, {cc}", need=(f"X{G}",))
    blk = ["s_mov_b32 exec_lo, 0x00ff00ff", "s_mov_b32 exec_hi, 0xff00ff00"]
    for r in range(4):
        for e in (0, 2):
            blk.append(f"ds_write2_b32 v12, v{QD+4*e+r}, v{QD+4*(e+1)+r} offset0:{32*r+e} offset1:{32*r+e+1}")
    blk += ["s_mov_b64 exec, -1", "s_waitcnt lgkmcnt(0)", "s_barrier"]
    c(blk)
    blk = [f"s_cmp_lg_u32 s{S_WAVE}, 0", "s_cbranch_scc1 L_qpub_done"]
    for p in range(8): blk.append(f"ds_read_b128 {vr(64+4*p)}, v14 offset:{1024*p}")
    blk.append("s_waitcnt lgkmcnt(0)")
    for st in (16, 8, 4):
        for i in range(st): blk.append(f"v_add_f32 v{64+i}, v{64+i}, v{64+st+i}")
    blk += ["v_cvt_pk_bf16_f32 v68, v64, v65", "v_cvt_pk_bf16_f32 v69, v66, v67"]
    blk += ["v_lshlrev_b32 v64, 16, v68", "v_lshlrev_b32 v66, 16, v69"]
    blk += [f"v_perm_b32 v64, v64, v{V_TAG}, s{S_INS}", f"v_perm_b32 v65, v68, v{V_TAG}, s{S_INS+1}", f"v_perm_b32 v66, v66, v{V_TAG}, s{S_INS+2}", f"v_perm_b32 v67, v69, v{V_TAG}, s{S_INS+3}"]
    blk += [f"buffer_store_dwordx4 {vr(64)}, v13, {srd(SRD_WS)}, 0 offen sc1", "s_nop 1", "L_qpub_done:"] + stamp()
    c(blk, mark="qproj_done")
    c(f"s_lshl_b32 s8, s{S_BR}, 5"); c(f"s_or_b32 s8, s8, s{S_HEAD}")
    c("s_lshl_b32 s10, s8, 3"); c(f"s_lshl_b32 s{S_T}, s{S_WAVE}, 1"); c(f"s_or_b32 s10, s10, s{S_T}")
    c("v_lshrrev_b32 v4, 5, v0"); c("v_add_u32 v4, s10, v4")
    c(f"v_lshlrev_b32 v{V_ML}, 6, v4"); c(f"v_add_u32 v{V_ML}, {WS_ML}, v{V_ML}")
    c("v_and_b32 v5, 31, v0"); c(f"v_lshlrev_b32 v{V_O1C}, 11, v4"); c(f"v_lshl_or_b32 v{V_O1C}, v5, 4, v{V_O1C}"); c(f"v_add_u32 v{V_O1C}, {WS_O1}, v{V_O1C}")
    c(f"s_lshl_b32 s10, s{S_HEAD}, 17"); c(f"s_lshl_b32 s{S_T}, s{S_S}, 8"); c(f"s_or_b32 s10, s10, s{S_T}"); c(f"s_lshl_b32 s{S_T}, s{S_WAVE}, 6"); c(f"s_or_b32 s10, s10, s{S_T}")
    c("v_and_b32 v5, 15, v0"); c(f"v_lshlrev_b32 v{V_WO}, 11, v6"); c(f"v_lshl_or_b32 v{V_WO}, v5, 2, v{V_WO}"); c(f"v_add_u32 v{V_WO}, s10, v{V_WO}")
    c("s_lshl_b32 s10, s8, 14"); c(f"s_lshl_b32 s{S_T}, s{S_S}, 12"); c(f"s_or_b32 s10, s10, s{S_T}"); c(f"s_lshl_b32 s{S_T}, s{S_WAVE}, 10"); c(f"s_or_b32 s10, s10, s{S_T}"); c(f"s_add_u32 s10, s10, {WS_P2}")
    c(f"v_lshlrev_b32 v{V_P2S}, 6, v5"); c(f"v_lshl_or_b32 v{V_P2S}, v6, 4, v{V_P2S}"); c(f"v_add_u32 v{V_P2S}, s10, v{V_P2S}")
    c(f"s_lshl_b32 s{S_T}, s{S_HEAD}, 2"); c(f"s_or_b32 s{S_T}, s{S_T}, s{S_S}")
    c(f"s_lshl_b32 s10, s{S_T}, 7"); c(f"s_lshl_b32 s8, s{S_BR}, 19"); c("s_or_b32 s10, s10, s8"); c(f"s_add_u32 s10, s10, {WS_P2}")
    c("v_and_b32 v5, 7, v0"); c(f"v_lshlrev_b32 v{V_P2L}, 14, v7"); c(f"v_lshl_or_b32 v{V_P2L}, v5, 4, v{V_P2L}"); c(f"v_add_u32 v{V_P2L}, s10, v{V_P2L}")
    c(f"s_lshl_b32 s10, s{S_T}, 3"); c(f"s_lshl_b32 s8, s{S_BR}, 10"); c("s_or_b32 s10, s10, s8")
    c("v_and_b32 v5, 1, v0"); c(f"v_lshlrev_b32 v{V_OUT}, 13, v5"); c(f"v_lshl_or_b32 v{V_OUT}, v6, 11, v{V_OUT}"); c("v_and_b32 v5, 6, v0"); c(f"v_or_b32 v{V_OUT}, v{V_OUT}, v5"); c(f"v_add_u32 v{V_OUT}, s10, v{V_OUT}")
    c(["L_chk_q:"] + check_block([QP + 4 * i for i in range(8)], DT, "L_retry_q") + ["L_ok_q:"] + stamp(), need="QP7")
    tail_code += ["L_retry_q:", f"s_cmp_eq_u32 s{S_CNT}, 0", "s_cbranch_scc1 L_ok_q", f"s_sub_u32 s{S_CNT}, s{S_CNT}, 1", "s_sleep 4"] + qpoll_loads() + ["s_waitcnt vmcnt(0)", "s_branch L_chk_q"]
    for i in range(16):
        c(f"v_perm_b32 v{QA+i}, v{QP+2*i+1}, v{QP+2*i}, s{S_SELHI}", mark="q_packed" if i == 15 else None)
    def qk(br, T):
        q = QB if br else QA
        sb = (SB if br else SA) + 8 * T
        nm = f"K{'B' if br else 'A'}{T}_"
        for Tp in range(4):
            for L in range(2):
                i = 2 * Tp + L
                kreg = ar(32 * T + 4 * i) if br else vr(RING + 64 + 32 * T + 4 * i)
                cc = "0" if L == 0 else vr(DT + 4 * Tp)
                c(f"v_mfma_f32_16x16x32_bf16 {vr(DT+4*Tp)}, {kreg}, {vr(q+4*L)}, {cc}", need=nm + str(i), mark=(f"qkA{T}" if (not br and i == 7) else None))
        for Tp in range(4):
            for u in range(2):
                d = DT + 4 * Tp + 2 * u
                c(f"v_add_f32_dpp v{sb+2*Tp+u}, v{d+1}, v{d} row_shl:4 row_mask:0xf bank_mask:0xf bound_ctrl:0")
        mreg = 5 if br else 4
        for i in range(4):
            if T == 0 and i == 0: c(f"v_max_f32 v{mreg}, v{sb}, v{sb+1}")
            else: c(f"v_max3_f32 v{mreg}, v{sb+2*i}, v{sb+2*i+1}, v{mreg}")
    for T in range(8): qk(1, T)
    for T in range(2): qk(0, T)
    c("v_mov_b32 v7, v4"); c("v_mov_b32 v10, v5")
    c("v_permlane16_swap_b32 v7, v4"); c("v_permlane16_swap_b32 v10, v5")
    c("v_max_f32 v4, v4, v7"); c("v_max_f32 v5, v5, v10")
    c("v_mov_b32 v7, v4"); c("v_mov_b32 v10, v5")
    c("v_permlane32_swap_b32 v7, v4"); c("v_permlane32_swap_b32 v10, v5")
    c("v_max_f32 v4, v4, v7"); c("v_max_f32 v5, v5, v10")
    c("v_and_b32 v11, 3, v0"); c("v_lshlrev_b32 v11, 4, v11"); c(f"v_add_u32 v11, {L_M}, v11")
    c(f"s_lshl_b32 s8, s{S_WAVE}, 2"); c("v_add_u32 v7, s8, v11")
    c(["s_mov_b64 exec, 15", "ds_write2_b32 v7, v4, v5 offset0:0 offset1:16", "s_mov_b64 exec, -1", "s_waitcnt lgkmcnt(0)", "s_barrier",
       f"ds_read_b128 {vr(DT)}, v11", f"ds_read_b128 {vr(DT+4)}, v11 offset:64"] + stamp())
    for i in range(4): c(f"v_mov_b32 v{DT+8+i}, 0x3f803f80")
    c("s_waitcnt lgkmcnt(0)")
    for br in range(2):
        d = DT + 4 * br; m = 4 + br
        c(f"v_max3_f32 v{m}, v{d}, v{d+1}, v{d+2}"); c(f"v_max_f32 v{m}, v{m}, v{d+3}"); c(f"v_mul_f32 v{m}, s{S_C}, v{m}")
    for br, nT in ((0, 2), (1, 8)):
        base = SB if br else SA
        for T in range(nT):
            sb = base + 8 * T
            for t in range(8): c(f"v_fma_f32 v{sb+t}, v{sb+t}, s{S_C}, -v{4+br}")
            for t in range(8): c(f"v_exp_f32 v{sb+t}, v{sb+t}")
            for p in range(4): c(f"v_cvt_pk_bf16_f32 v{base+4*T+p}, v{sb+2*p}, v{sb+2*p+1}")
        lreg = LB if br else LA
        for T in range(nT):
            cc = "0" if T == 0 else vr(lreg)
            c(f"v_mfma_f32_16x16x32_bf16 {vr(lreg)}, {vr(DT+8)}, {vr(base+4*T)}, {cc}")
    c("v_and_b32 v10, 3, v0"); c(f"v_mul_u32_u24 v10, {OH}, v10"); c("v_lshl_add_u32 v10, v6, 7, v10"); c(f"s_mul_i32 s8, s{S_WAVE}, {OW}"); c("v_add_u32 v10, s8, v10")
    c(["s_mov_b64 exec, 15", f"ds_write2_b32 v7, v{LA}, v{LB} offset0:32 offset1:48", "s_mov_b64 exec, -1"])
    c(f"s_mul_i32 s8, s{S_WAVE}, {OH}"); c("v_lshl_add_u32 v11, v0, 4, s8")
    c(f"s_lshl_b32 s8, s{S_KVH}, 2"); c(f"s_or_b32 s8, s8, s{S_WAVE}"); c("s_lshl_b32 s8, s8, 3"); c(f"s_or_b32 s8, s8, s{S_B}"); c("s_lshl_b32 s8, s8, 2"); c(f"s_or_b32 s8, s8, s{S_S}")
    c("s_lshl_b32 s8, s8, 9"); c(f"s_add_u32 s8, s8, {WS_O1}"); c("v_lshl_add_u32 v7, v0, 4, s8")
    c([f"s_mov_b32 s{S_MASK}, 0x000f000f", f"s_mov_b32 s{S_MASK+1}, 0x000f000f"] + stamp())
    def pv(n):
        br, T = (0, n) if n < 2 else (1, n - 2)
        vb = RING + 32 * (n % 4)
        P = (SB if br else SA) + 4 * T
        for p in range(4):
            for e in range(8):
                sel = S_SELHI if e & 1 else S_SELLO
                c(f"v_perm_b32 v{VT+4*e+p}, v{vb+4*(2*p+1)+e//2}, v{vb+4*(2*p)+e//2}, s{sel}", need=f"V{n}_{2*p+1}", mark=(f"perm{n}_{p}" if e == 7 else None))
        for e in range(8):
            cc = "0" if T == 0 else vr(OACC + 4 * e)
            c(f"v_mfma_f32_16x16x32_bf16 {vr(OACC+4*e)}, {vr(VT+4*e)}, {vr(P)}, {cc}")
    def combine(br):
        lo = L_OB if br else L_OA
        blk = [f"s_mov_b64 exec, s[{S_MASK}:{S_MASK+1}]"]
        for e in range(8): blk.append(f"ds_write_b128 v10, {vr(OACC+4*e)} offset:{lo+16*e}")
        blk += ["s_mov_b64 exec, 0xffffffff" if False else "s_mov_b32 exec_lo, -1", "s_mov_b32 exec_hi, 0", "s_waitcnt lgkmcnt(0)", "s_barrier"]
        for w in range(4): blk.append(f"ds_read_b128 {vr(VT+4*w)}, v11 offset:{lo+OW*w}")
        blk.append("s_waitcnt lgkmcnt(0)")
        for i in range(4): blk.append(f"v_add_f32 v{VT+i}, v{VT+i}, v{VT+4+i}")
        for i in range(4): blk.append(f"v_add_f32 v{VT+8+i}, v{VT+8+i}, v{VT+12+i}")
        for i in range(4): blk.append(f"v_add_f32 v{VT+i}, v{VT+i}, v{VT+8+i}")
        for i in range(4): blk.append(f"v_perm_b32 v{VT+16+i}, v{VT+i}, v{V_TAG}, s{S_INS+i}")
        so = f"s{S_C80000}" if br else "0"
        blk += [f"buffer_store_dwordx4 {vr(VT+16)}, v7, {srd(SRD_WS)}, {so} offen sc1", "s_mov_b64 exec, -1"]
        return blk
    pv(0); pv(1)
    c(combine(0))
    blk = [f"s_cmp_lg_u32 s{S_WAVE}, 1", "s_cbranch_scc1 L_mlpub_done", "s_mov_b64 exec, 0xff",
           "v_lshlrev_b32 v36, 4, v0", f"ds_read_b128 {vr(40)}, v36 offset:{L_M}", f"ds_read_b128 {vr(44)}, v36 offset:{L_L}",
           f"s_lshl_b32 s8, s{S_KVH}, 11", f"s_lshl_b32 s10, s{S_B}, 6", "s_or_b32 s8, s8, s10", f"s_lshl_b32 s10, s{S_S}, 4", "s_or_b32 s8, s8, s10", f"s_add_u32 s8, s8, {WS_ML}",
           "v_and_b32 v37, 3, v0", "v_lshlrev_b32 v37, 9, v37", "v_lshrrev_b32 v38, 2, v0", "v_lshl_or_b32 v37, v38, 14, v37", "v_add_u32 v37, s8, v37",
           "s_waitcnt lgkmcnt(0)",
           "v_max3_f32 v40, v40, v41, v42", "v_max_f32 v40, v40, v43", f"v_mul_f32 v40, s{S_C}, v40",
           "v_add_f32 v44, v44, v45", "v_add_f32 v46, v46, v47", "v_add_f32 v42, v44, v46",
           "v_lshlrev_b32 v41, 8, v40",
           f"v_perm_b32 v40, v40, v{V_TAG}, s{S_INS}", f"v_perm_b32 v41, v41, v{V_TAG}, s{S_INS+1}", f"v_perm_b32 v42, v42, v{V_TAG}, s{S_INS+2}", f"v_perm_b32 v43, v42, v{V_TAG}, s{S_INS+3}",
           f"buffer_store_dwordx4 {vr(40)}, v37, {srd(SRD_WS)}, 0 offen sc1", "s_mov_b64 exec, -1", "s_nop 1", "L_mlpub_done:"] + stamp()
    c(blk, mark="pubA")
    mlt = mlpoll_at // 8 + 1
    for n in range(2, 10):
        pv(n)
        if n == mlt:
            c(["L_chk_ml:"] + check_block([MLR + 4 * i for i in range(4)], 4, "L_retry_ml") + ["L_ok_ml:"], need="ML3")
            tail_code += ["L_retry_ml:", f"s_cmp_eq_u32 s{S_CNT}, 0", "s_cbranch_scc1 L_ok_ml", f"s_sub_u32 s{S_CNT}, s{S_CNT}, 1", "s_sleep 4"] + ml_loads() + ["s_waitcnt vmcnt(0)", "s_branch L_chk_ml"]
            c("s_mov_b32 s8, 0x07060501")
            for s in range(4): c(f"v_perm_b32 v{MLR+4*s}, v{MLR+4*s}, v{MLR+4*s+1}, s8")
            c(f"v_max3_f32 v4, v{MLR}, v{MLR+4}, v{MLR+8}"); c(f"v_max_f32 v4, v4, v{MLR+12}")
            for s in range(4): c(f"v_sub_f32 v{MLR+4*s}, v{MLR+4*s}, v4")
            for s in range(4): c(f"v_exp_f32 v{MLR+4*s}, v{MLR+4*s}")
            c(f"v_mul_f32 v4, v{MLR}, v{MLR+2}")
            for s in range(1, 4): c(f"v_fmac_f32 v4, v{MLR+4*s}, v{MLR+4*s+2}")
            c("v_rcp_f32 v4, v4")
            for s in range(4): c(f"v_mul_f32 v{MLR+4*s}, v{MLR+4*s}, v4")
            c("v_lshrrev_b32 v4, 5, v0"); c("v_mul_u32_u24 v4, 272, v4"); c("v_and_b32 v5, 31, v0"); c("v_lshl_add_u32 v4, v5, 3, v4")
            c(f"s_mul_i32 s8, s{S_WAVE}, 544"); c(f"s_add_u32 s8, s8, {L_O}"); c("v_add_u32 v4, s8, v4")
            c("v_and_b32 v5, 7, v0"); c("v_mul_u32_u24 v5, 272, v5"); c("v_lshrrev_b32 v6, 4, v0"); c("v_lshl_add_u32 v5, v6, 4, v5")
    c(stamp() + combine(1) + stamp())
    S.run()
    O1R = 64
    WT = 96
    def o1_loads(): return [f"buffer_load_dwordx4 {vr(O1R+4*s)}, v{V_O1C}, {srd(SRD_WS)}, 0 offen offset:{512*s} sc1" for s in range(4)]
    O.extend(o1_loads())
    A("s_waitcnt vmcnt(4)")
    for kc in range(4):
        for p in range(4):
            for e in range(2):
                A(f"v_perm_b32 v{WT+16*e+4*kc+p}, v{WOD+8*kc+2*p+1}, v{WOD+8*kc+2*p}, s{S_SELHI if e else S_SELLO}")
    A(f"s_mov_b32 s{S_MASK}, 0"); A(f"s_mov_b32 s{S_MASK+1}, -1")
    A("L_w_o1:")
    A("s_waitcnt vmcnt(0)")
    O.extend(check_block([O1R + 4 * s for s in range(4)], 80, "L_retry_o1"))
    A("L_ok_o1:")
    tail_code += ["L_retry_o1:", f"s_cmp_eq_u32 s{S_CNT}, 0", "s_cbranch_scc1 L_ok_o1", f"s_sub_u32 s{S_CNT}, s{S_CNT}, 1", "s_sleep 1"] + o1_loads() + ["s_branch L_w_o1"]
    O.extend(stamp())
    for i in range(4): A(f"v_mul_f32 v{80+i}, v{MLR}, v{O1R+i}")
    for s in range(1, 4):
        for i in range(4): A(f"v_fmac_f32 v{80+i}, v{MLR+4*s}, v{O1R+4*s+i}")
    A("v_cvt_pk_bf16_f32 v84, v80, v81"); A("v_cvt_pk_bf16_f32 v85, v82, v83")
    A("ds_write_b64 v4, v[84:85]"); A("s_waitcnt lgkmcnt(0)"); A("s_barrier")
    for kc in range(4): A(f"ds_read_b128 {vr(16+4*kc)}, v5 offset:{L_O+64*kc}")
    A("s_waitcnt lgkmcnt(0)")
    for kc in range(4):
        for e in range(2):
            cc = "0" if kc == 0 else vr(32 + 4 * e)
            A(f"v_mfma_f32_16x16x32_bf16 {vr(32+4*e)}, {vr(16+4*kc)}, {vr(WT+16*e+4*kc)}, {cc}")
    for i in range(4): A(f"v_cndmask_b32 v{40+i}, v{32+i}, v{36+i}, s[{S_MASK}:{S_MASK+1}]")
    for i in range(4): A(f"v_perm_b32 v{40+i}, v{40+i}, v{V_TAG}, s{S_INS+i}")
    A(f"buffer_store_dwordx4 {vr(40)}, v{V_P2S}, {srd(SRD_WS)}, 0 offen sc1")
    O.extend(stamp())
    A(f"s_cmp_lg_u32 s{S_WAVE}, 0"); A("s_cbranch_scc1 L_fin")
    P2R = 64
    def p2_loads(): return [f"buffer_load_dwordx4 {vr(P2R+4*i)}, v{V_P2L}, {srd(SRD_WS)}, {so} offen sc1" for i, so in enumerate(("0", f"s{S_C20000}", f"s{S_C40000}", f"s{S_C60000}"))]
    A("L_p2:")
    O.extend(p2_loads())
    A("s_waitcnt vmcnt(0)")
    O.extend(check_block([P2R + 4 * i for i in range(4)], 80, "L_retry_p2"))
    A("L_ok_p2:")
    tail_code += ["L_retry_p2:", f"s_cmp_eq_u32 s{S_CNT}, 0", "s_cbranch_scc1 L_ok_p2", f"s_sub_u32 s{S_CNT}, s{S_CNT}, 1", "s_sleep 1", "s_branch L_p2"]
    for i in range(4): A(f"v_add_f32 v{P2R+i}, v{P2R+i}, v{P2R+4+i}")
    for i in range(4): A(f"v_add_f32 v{P2R+8+i}, v{P2R+8+i}, v{P2R+12+i}")
    for i in range(4): A(f"v_add_f32 v{P2R+i}, v{P2R+i}, v{P2R+8+i}")
    A(f"v_permlane32_swap_b32 v{P2R}, v{P2R+2}"); A(f"v_permlane32_swap_b32 v{P2R+1}, v{P2R+3}")
    A(f"v_add_f32 v{P2R}, v{P2R}, v{P2R+2}"); A(f"v_add_f32 v{P2R+1}, v{P2R+1}, v{P2R+3}")
    A(f"v_permlane16_swap_b32 v{P2R}, v{P2R+1}")
    A(f"v_add_f32 v{P2R}, v{P2R}, v{P2R+1}")
    A(f"v_add_f32_dpp v{P2R+1}, v{P2R}, v{P2R} row_ror:8 row_mask:0xf bank_mask:0xf")
    A(f"v_cvt_pk_bf16_f32 v{P2R+1}, v{P2R+1}, v{P2R+1}")
    A(f"buffer_store_short v{P2R+1}, v{V_OUT}, {srd(SRD_OUT)}, 0 offen")
    A("s_cmp_lg_u32 s2, 0"); A("s_cbranch_scc1 L_fin")
    A("v_mov_b32 v4, 0"); A("s_mov_b64 exec, 1")
    A(f"buffer_store_dword v{V_TAG}, v4, {srd(SRD_WS)}, 0 offen offset:{WS_E}")
    A("L_fin:")
    if stamps:
        O.extend(stamp())
        A("s_waitcnt lgkmcnt(0)")
        A("s_lshl_b32 s8, s2, 4"); A(f"s_add_u32 s8, s8, s{S_WAVE}"); A("s_lshl_b32 s8, s8, 7"); A(f"s_add_u32 s8, s8, {64<<20}")
        A("s_mov_b64 exec, 1"); A("v_mov_b32 v4, 0")
        for i in range(nst[0]):
            A(f"v_mov_b32 v16, s{S_STAMP+2*i}"); A(f"v_mov_b32 v17, s{S_STAMP+2*i+1}")
            A(f"buffer_store_dwordx2 v[16:17], v4, {srd(SRD_WS)}, s8 offen offset:{8*i}")
            A("s_nop 1")
    A("L_end:"); A("s_endpgm")
    O.extend(tail_code)
    A("L_code_end:")
    body = finalize(O)
    hdr = HEADER + f"; @launch grid=(256,1,1) block=(256,1,1) lds={LDS_BYTES}\n"
    hdr += '.amdgcn_target "amdgcn-amd-amdhsa--gfx950"\n.text\n' + f".globl {NAME}_kernel\n.p2align 8\n.type {NAME}_kernel,@function\n"
    ftr = f"""
.section .rodata,"a"
.p2align 6
.amdhsa_kernel {NAME}_kernel
  .amdhsa_next_free_vgpr 512
  .amdhsa_next_free_sgpr 102
  .amdhsa_accum_offset 256
  .amdhsa_group_segment_fixed_size 0
  .amdhsa_kernarg_size 104
  .amdhsa_user_sgpr_count 2
  .amdhsa_user_sgpr_kernarg_segment_ptr 1
  .amdhsa_system_sgpr_workgroup_id_x 1
.end_amdhsa_kernel
"""
    return hdr + "\n".join(body) + ftr, nst[0]

if __name__ == "__main__":
    out = sys.argv[1]
    kw = {}
    for a in sys.argv[2:]:
        k, v = a.split("=")
        kw[k] = eval(v)
    txt, n = gen(**kw)
    open(out, "w").write(txt)
    print(out, "stamps:", n, "lines:", txt.count("\n"))
```

```python
import sys, struct
from asmlib import finalize
NAME = "concat_heads__sliding_block_cached__gqa_block_cached__decode"
HEADER = open("cdna_kernels/" + NAME + ".s.ref").read().split("; Override launch geometry")[0]

def f32(x): return struct.unpack("<I", struct.pack("<f", x))[0]

WS_E, WS_Q, WS_ML, WS_O1, WS_P2 = 0, 0x10000, 0x60000, 0x80000, 0x200000
WS_BYTES = 285229056
L_QP, L_M, L_L, L_OA, L_OB, L_O = 0x0, 0x2000, 0x2080, 0x2100, 0x4200, 0x6300
OW, OH = 2112, 528
LDS_BYTES = 0x7000
S_WG, S_WAVE = 2, 3
SRD_KB, SRD_KA, SRD_VA, SRD_VB, SRD_WQ, SRD_X, SRD_WO, SRD_WS, SRD_OUT = 32, 36, 40, 44, 48, 52, 56, 60, 64
S_BR, S_KVH, S_B, S_S, S_HEAD = 5, 9, 12, 11, 13
S_SOFF = 14
S_T = 15
S_T2 = 4
S_SELLO, S_SELHI = 16, 17
S_TAG = 18
S_INS = 22
S_C = 26
S_CNT = 27
S_C20000, S_C40000, S_C60000, S_C80000 = 28, 29, 30, 31
S_MASK = 68
S_PC = 70
S_STAMP = 72
V_L, V_K, V_V, V_TAG = 0, 1, 2, 3
V_T0 = 4
QA, QB, DT, SA, SB, OACC, RING, VT = 16, 24, 32, 48, 64, 96, 128, 16
LA, LB = 56, 60
def srd(n): return f"s[{n}:{n+3}]"
def vr(n, k=4): return f"v[{n}:{n+k-1}]"
def ar(n, k=4): return f"a[{n}:{n+k-1}]"

class Sched:
    def __init__(self, out, F, CAP):
        self.out, self.F, self.CAP = out, F, CAP
        self.issued = 0
        self.landed = 0
        self.seq = {}
        self.marks = set()
        self.comp = []
        self.loads = []
    def c(self, lines, need=(), mark=None):
        if isinstance(lines, str): lines = [lines]
        if isinstance(need, str): need = (need,)
        self.comp.append((lines, tuple(need), mark))
    def ld(self, text, name=None, pre=(), after=None, F=None):
        self.loads.append((text, name, tuple(pre), after, F))
    def wait_landed(self, n):
        if n > self.landed:
            k = self.issued - n
            assert k >= 0
            self.out.append(f"s_waitcnt vmcnt({min(k, 63)})")
            self.landed = max(n, self.issued - min(k, 63))
    def ready(self, item):
        return all(nm in self.seq and self.seq[nm] <= self.landed for nm in item[1])
    def emit_comp(self, force=False):
        lines, need, mark = self.comp.pop(0)
        for nm in need:
            assert nm in self.seq, f"compute needs load {nm} not issued yet"
            self.wait_landed(self.seq[nm])
        self.out.extend(lines)
        if mark: self.marks.add(mark)
        return len(lines)
    def run(self):
        for idx, (text, name, pre, after, F) in enumerate(self.loads):
            while after and after not in self.marks:
                self.emit_comp()
            F = self.F if F is None else F
            self.out.extend(pre)
            self.wait_landed(max(0, self.issued - (F - 1)))
            self.out.append(text)
            self.issued += 1
            if name: self.seq[name] = self.issued
            n = 0
            if idx + 1 < len(self.loads):
                Fn = self.loads[idx + 1][4]
                Fn = self.F if Fn is None else Fn
                if self.issued - self.landed < Fn: continue
            while self.comp and n < self.CAP and self.ready(self.comp[0]):
                n += self.emit_comp()
        self.loads = []
        while self.comp: self.emit_comp()

def check_block(regs, tmp, retry):
    o = []; acc = []
    t = tmp
    assert len(regs) % 2 == 0
    for a, b in zip(regs[0::2], regs[1::2]):
        for k in range(4):
            o.append(f"v_bitop3_b32 v{t}, v{a+k}, v{b+k}, s{S_TAG+k} bitop3:0x7e"); acc.append(t); t += 1
            if len(acc) == 3:
                o.append(f"v_or3_b32 v{acc[0]}, v{acc[0]}, v{acc[1]}, v{acc[2]}"); acc = [acc[0]]; t = acc[0] + 1
    if len(acc) == 2: o.append(f"v_or_b32 v{acc[0]}, v{acc[0]}, v{acc[1]}")
    o.append(f"v_and_b32 v{acc[0]}, 0xff, v{acc[0]}")
    o.append(f"v_cmp_ne_u32 vcc, 0, v{acc[0]}")
    o.append(f"s_cbranch_vccnz {retry}")
    return o

def gen(F=6, CAP=24, stamps=False, qpoll_at=44, wq_at=6, Fwo=40, Fend=None, pol="nt", wpol="nt", mlpoll_at=52, dbg=False):
    O = []; A = O.append
    tail_code = []
    nst = [0]
    def stamp():
        if not stamps: return []
        i = nst[0]; nst[0] += 1
        return [f"s_memrealtime s[{S_STAMP+2*i}:{S_STAMP+2*i+1}]"]
    A(f"{NAME}_kernel:")
    A("s_cmp_ge_u32 s2, 256"); A("s_cbranch_scc1 L_end")
    A(f"s_load_dwordx2 s[{SRD_KB}:{SRD_KB+1}], s[0:1], 48")
    A(f"s_load_dwordx2 s[{SRD_WS}:{SRD_WS+1}], s[0:1], 96")
    A(f"s_lshr_b32 s{S_BR}, s2, 7"); A(f"s_mul_i32 s6, s{S_BR}, 40")
    A(f"s_load_dwordx2 s[{SRD_X}:{SRD_X+1}], s[0:1], s6")
    A(f"s_load_dwordx2 s[{SRD_WQ}:{SRD_WQ+1}], s[0:1], s6 offset:24")
    A(f"s_load_dwordx2 s[{SRD_WO}:{SRD_WO+1}], s[0:1], s6 offset:32")
    A(f"s_load_dwordx2 s[{SRD_KA}:{SRD_KA+1}], s[0:1], 8")
    A(f"s_load_dwordx2 s[{SRD_VA}:{SRD_VA+1}], s[0:1], 16")
    A(f"s_load_dwordx2 s[{SRD_VB}:{SRD_VB+1}], s[0:1], 56")
    A(f"s_load_dwordx2 s[{SRD_OUT}:{SRD_OUT+1}], s[0:1], 80")
    O.extend(stamp())
    if dbg:
        A("s_memrealtime s[96:97]"); A("s_load_dwordx2 s[92:93], s[0:1], 88")
    A("v_lshrrev_b32 v4, 6, v0"); A("v_and_b32 v0, 63, v0"); A(f"v_readfirstlane_b32 s{S_WAVE}, v4")
    A("v_bfe_u32 v5, v0, 1, 1"); A("v_bfe_u32 v6, v0, 2, 2"); A("v_lshlrev_b32 v5, 10, v5"); A("v_lshl_or_b32 v5, v6, 8, v5")
    A("v_lshrrev_b32 v6, 4, v0"); A("v_lshl_or_b32 v5, v6, 5, v5"); A("v_and_b32 v7, 1, v0"); A("v_lshl_or_b32 v5, v7, 4, v5")
    A(f"s_lshr_b32 s{S_B}, s2, 5"); A(f"s_lshl_b32 s8, s{S_B}, 23"); A(f"s_and_b32 s{S_KVH}, s2, 7"); A(f"s_lshl_b32 s10, s{S_KVH}, 20"); A("s_or_b32 s8, s8, s10")
    A(f"s_bfe_u32 s{S_S}, s2, 0x20003"); A(f"s_lshl_b32 s10, s{S_S}, 14"); A("s_or_b32 s8, s8, s10"); A(f"s_lshl_b32 s10, s{S_WAVE}, 12"); A("s_or_b32 s8, s8, s10")
    A(f"s_mov_b32 s{SRD_KB+2}, 0x4000000"); A(f"s_mov_b32 s{SRD_KB+3}, 0x20000")
    A(f"v_add_u32 v{V_K}, s8, v5"); A(f"v_lshl_add_u32 v{V_V}, v0, 4, s8")
    A("s_waitcnt lgkmcnt(0)")

    S = Sched(O, F, CAP)
    KOFF = [0, 128, 2048, 2176]
    kl = []
    for T in range(8):
        for i in range(8):
            m = 2 * T + i // 4
            pre = [f"s_mov_b32 s{S_SOFF}, {m*65536}"] if (i % 4 == 0 and m) else []
            so = f"s{S_SOFF}" if m else "0"
            kl.append(dict(text=f"buffer_load_dwordx4 {ar(32*T+4*i)}, v{V_K}, {srd(SRD_KB)}, {so} offen offset:{KOFF[i%4]} {pol}", name=f"KB{T}_{i}", pre=pre))
    for T in range(2):
        for i in range(8):
            m = 2 * T + i // 4
            pre = [f"s_mov_b32 s{S_SOFF}, {3072*256 + m*65536}"] if i % 4 == 0 else []
            kl.append(dict(text=f"buffer_load_dwordx4 {vr(RING+64+32*T+4*i)}, v{V_K}, {srd(SRD_KA)}, s{S_SOFF} offen offset:{KOFF[i%4]} {pol}", name=f"KA{T}_{i}", pre=pre, after="setup"))
    WQD, XD, WQT, QD = 128, 160, 64, 96
    V_WQ, V_X = 8, 9
    wql = []
    for G in range(2):
        wql.append(dict(text=f"buffer_load_dwordx4 {vr(XD+4*G)}, v{V_X}, {srd(SRD_X)}, 0 offen offset:{128*G}", name=f"X{G}", after="setup", F=64))
        for t in range(8):
            wql.append(dict(text=f"buffer_load_dwordx2 {vr(WQD+16*G+2*t,2)}, v{V_WQ}, {srd(SRD_WQ)}, s{S_T2} offen {wpol}", name=f"WQ{G}_{t}",
                            pre=[f"s_mov_b32 s{S_T2}, {(64*G+t)*8192}"], F=64))
    wql.append(dict(text=f"global_load_dword v168, v10, s[{S_PC}:{S_PC+1}]", F=64))
    V_QP = 11
    QP = 128
    def qpoll_loads():
        r = []
        for br in range(2):
            for Lh in range(4):
                so = f"s{S_C20000}" if br else "0"
                r.append(f"buffer_load_dwordx4 {vr(QP+16*br+4*Lh)}, v{V_QP}, {srd(SRD_WS)}, {so} offen offset:{(Lh//2)*256+(Lh%2)*16} sc1")
        return r
    qpl = [dict(text=t, name=f"QP{i}", after="qproj_done", F=F+8) for i, t in enumerate(qpoll_loads())]
    stream = kl[:wq_at] + wql + kl[wq_at:qpoll_at] + qpl + kl[qpoll_at:]
    vl = []
    for n in range(10):
        for t in range(8):
            br, T = (0, n) if n < 2 else (1, n - 2)
            m = 2 * T + t // 4
            off = m * 65536 + (3072 * 256 if br == 0 else 0)
            pre = [f"s_mov_b32 s{S_SOFF}, {off}"] if t % 4 == 0 else []
            after = {0: "q_packed", 1: "q_packed", 2: "qkA0", 3: "qkA1"}.get(n, f"perm{n-4}_{t//2}")
            vl.append(dict(text=f"buffer_load_dwordx4 {vr(RING+32*(n%4)+4*t)}, v{V_V}, {srd(SRD_VB if br else SRD_VA)}, s{S_SOFF} offen offset:{(t%4)*1024} {pol}",
                           name=f"V{n}_{t}", pre=pre, after=after))
    if Fend:
        for d in vl[-Fend[0]:]: d["F"] = Fend[1]
    MLR = 48
    V_ML, V_O1C, V_WO, V_P2S, V_P2L, V_OUT = 12, 13, 14, 15, 8, 9
    def ml_loads():
        return [f"buffer_load_dwordx4 {vr(MLR+4*s)}, v{V_ML}, {srd(SRD_WS)}, 0 offen offset:{16*s} sc1" for s in range(4)]
    mll = [dict(text=t, name=f"ML{i}", after="pubA", F=F+4) for i, t in enumerate(ml_loads())]
    mll.append(dict(text=f"buffer_load_dword a0, v{V_P2L}, {srd(SRD_WS)}, 0 offen sc1", F=F+5))
    mll.append(dict(text=f"buffer_load_ushort a1, v{V_OUT}, {srd(SRD_OUT)}, 0 offen", F=F+6))
    WOD = RING + 64
    wol = []
    for kc in range(4):
        for t4 in range(4):
            for th in range(2):
                t = th * 4 + t4
                pre = [f"s_mov_b32 s{S_SOFF}, {(32*kc+8*t4)*1024}"] if th == 0 else []
                wol.append(dict(text=f"buffer_load_dword v{WOD+8*kc+t}, v{V_WO}, {srd(SRD_WO)}, s{S_SOFF} offen offset:{th*1024} {wpol}", name=f"WO{kc}_{t}",
                                pre=pre, after="perm6_3", F=Fwo))
    stream += vl[:mlpoll_at] + mll + vl[mlpoll_at:] + wol
    for d in stream: S.ld(**d)

    c = S.c
    for n, sz in ((SRD_KA, 0x4000000), (SRD_VA, 0x4000000), (SRD_VB, 0x4000000), (SRD_WQ, 0x400000), (SRD_X, 8192), (SRD_WO, 0x400000), (SRD_WS, WS_BYTES), (SRD_OUT, 16384)):
        c(f"s_mov_b32 s{n+2}, {sz}"); c(f"s_mov_b32 s{n+3}, 0x20000")
    c(f"s_load_dword s{S_TAG}, s[{SRD_WS}:{SRD_WS+1}], {WS_E}")
    c("v_bfe_u32 v7, v0, 3, 3")
    c("v_and_b32 v5, 7, v0")
    c(f"s_bfe_u32 s{S_T}, s2, 0x40003")
    c(f"s_lshl_b32 s10, s{S_T}, 6"); c(f"s_lshl_b32 s8, s{S_KVH}, 10"); c("s_or_b32 s10, s10, s8"); c(f"s_lshl_b32 s8, s{S_WAVE}, 20"); c("s_or_b32 s10, s10, s8")
    c(f"v_lshlrev_b32 v{V_WQ}, 16, v7"); c(f"v_lshl_or_b32 v{V_WQ}, v5, 3, v{V_WQ}"); c(f"v_add_u32 v{V_WQ}, s10, v{V_WQ}")
    c(f"s_lshl_b32 s8, s{S_WAVE}, 8")
    c(f"v_lshlrev_b32 v{V_X}, 10, v5"); c(f"v_lshl_or_b32 v{V_X}, v7, 4, v{V_X}"); c(f"v_add_u32 v{V_X}, s8, v{V_X}")
    c([f"s_getpc_b64 s[{S_PC}:{S_PC+1}]", "L_pc:"])
    c("v_lshlrev_b32 v10, 6, v0"); c(f"s_lshl_b32 s8, s{S_WAVE}, 12"); c("v_add_u32 v10, s8, v10")
    c("v_min_u32 v10, L_code_end-L_pc-4, v10", mark="setup")
    c(f"s_mov_b32 s{S_SELLO}, 0x05040100"); c(f"s_mov_b32 s{S_SELHI}, 0x07060302")
    for k in range(4): c(f"s_mov_b32 s{S_INS+k}, {0x07060500 + k:#x}")
    c(f"s_mov_b32 s{S_C}, {f32((128 ** -0.5) * 1.4426950408889634):#x}")
    c(f"s_mov_b32 s{S_CNT}, 40000")
    c(f"s_mov_b32 s{S_C20000}, 0x20000"); c(f"s_mov_b32 s{S_C40000}, 0x40000"); c(f"s_mov_b32 s{S_C60000}, 0x60000"); c(f"s_mov_b32 s{S_C80000}, 0x80000")
    c(f"s_bfe_u32 s8, s2, 0x20005"); c(f"s_lshl_b32 s{S_HEAD}, s{S_KVH}, 2"); c(f"s_or_b32 s{S_HEAD}, s{S_HEAD}, s8")
    c(f"s_lshl_b32 s8, s{S_B}, 3"); c(f"s_or_b32 s8, s8, s{S_KVH}"); c("s_lshl_b32 s8, s8, 11"); c(f"s_add_u32 s8, s8, {WS_Q}")
    c("v_and_b32 v4, 3, v0"); c(f"v_lshlrev_b32 v{V_QP}, 9, v4"); c(f"v_lshl_or_b32 v{V_QP}, v6, 6, v{V_QP}")
    c("v_bfe_u32 v4, v0, 2, 1"); c(f"v_lshl_or_b32 v{V_QP}, v4, 5, v{V_QP}"); c(f"v_add_u32 v{V_QP}, s8, v{V_QP}")
    c("v_bfe_u32 v4, v0, 3, 1"); c("v_lshlrev_b32 v12, 10, v4"); c("v_bfe_u32 v4, v0, 4, 1"); c("v_lshl_or_b32 v12, v4, 9, v12"); c("v_lshl_or_b32 v12, v5, 4, v12")
    c(f"s_lshl_b32 s8, s{S_WAVE}, 11"); c("v_add_u32 v12, s8, v12")
    c(f"s_lshl_b32 s8, s{S_BR}, 17"); c(f"s_lshl_b32 s10, s{S_KVH}, 11"); c("s_or_b32 s8, s8, s10"); c(f"s_lshl_b32 s10, s{S_T}, 7"); c("s_or_b32 s8, s8, s10"); c(f"s_add_u32 s8, s8, {WS_Q}")
    c("v_lshlrev_b32 v13, 14, v7"); c("v_lshl_or_b32 v13, v5, 4, v13"); c("v_add_u32 v13, s8, v13")
    c("v_lshlrev_b32 v14, 4, v0")
    c(["s_waitcnt lgkmcnt(0)", f"s_add_u32 s{S_TAG}, s{S_TAG}, 0x9E3779B1"], need="X0")
    for k in range(1, 4): c(f"s_lshr_b32 s{S_TAG+k}, s{S_TAG}, {8*k}")
    c(f"v_mov_b32 v{V_TAG}, s{S_TAG}")
    for G in range(2):
        for p in range(4):
            for e in range(4):
                sel = S_SELHI if e & 1 else S_SELLO
                c(f"v_perm_b32 v{WQT+16*G+4*e+p}, v{WQD+16*G+2*(2*p+1)+e//2}, v{WQD+16*G+2*(2*p)+e//2}, s{sel}", need=(f"WQ{G}_{2*p+1}",))
        for e in range(4):
            cc = "0" if G == 0 else vr(QD + 4 * e)
            c(f"v_mfma_f32_16x16x32_bf16 {vr(QD+4*e)}, {vr(XD+4*G)}, {vr(WQT+16*G+4*e)}, {cc}", need=(f"X{G}",))
    blk = ["s_mov_b32 exec_lo, 0x00ff00ff", "s_mov_b32 exec_hi, 0xff00ff00"]
    for r in range(4):
        for e in (0, 2):
            blk.append(f"ds_write2_b32 v12, v{QD+4*e+r}, v{QD+4*(e+1)+r} offset0:{32*r+e} offset1:{32*r+e+1}")
    blk += ["s_mov_b64 exec, -1", "s_waitcnt lgkmcnt(0)", "s_barrier"]
    c(blk)
    blk = [f"s_cmp_lg_u32 s{S_WAVE}, 0", "s_cbranch_scc1 L_qpub_done"]
    for p in range(8): blk.append(f"ds_read_b128 {vr(64+4*p)}, v14 offset:{1024*p}")
    blk.append("s_waitcnt lgkmcnt(0)")
    for st in (16, 8, 4):
        for i in range(st): blk.append(f"v_add_f32 v{64+i}, v{64+i}, v{64+st+i}")
    blk += ["v_cvt_pk_bf16_f32 v68, v64, v65", "v_cvt_pk_bf16_f32 v69, v66, v67"]
    blk += ["v_lshlrev_b32 v64, 16, v68", "v_lshlrev_b32 v66, 16, v69"]
    blk += [f"v_perm_b32 v64, v64, v{V_TAG}, s{S_INS}", f"v_perm_b32 v65, v68, v{V_TAG}, s{S_INS+1}", f"v_perm_b32 v66, v66, v{V_TAG}, s{S_INS+2}", f"v_perm_b32 v67, v69, v{V_TAG}, s{S_INS+3}"]
    blk += [f"buffer_store_dwordx4 {vr(64)}, v13, {srd(SRD_WS)}, 0 offen sc1", "s_nop 1", "L_qpub_done:"] + stamp()
    c(blk, mark="qproj_done")
    c(f"s_lshl_b32 s8, s{S_BR}, 5"); c(f"s_or_b32 s8, s8, s{S_HEAD}")
    c("s_lshl_b32 s10, s8, 3"); c(f"s_lshl_b32 s{S_T}, s{S_WAVE}, 1"); c(f"s_or_b32 s10, s10, s{S_T}")
    c("v_lshrrev_b32 v4, 5, v0"); c("v_add_u32 v4, s10, v4")
    c(f"v_lshlrev_b32 v{V_ML}, 6, v4"); c(f"v_add_u32 v{V_ML}, {WS_ML}, v{V_ML}")
    c("v_and_b32 v5, 31, v0"); c(f"v_lshlrev_b32 v{V_O1C}, 11, v4"); c(f"v_lshl_or_b32 v{V_O1C}, v5, 4, v{V_O1C}"); c(f"v_add_u32 v{V_O1C}, {WS_O1}, v{V_O1C}")
    c(f"s_lshl_b32 s10, s{S_HEAD}, 17"); c(f"s_lshl_b32 s{S_T}, s{S_S}, 8"); c(f"s_or_b32 s10, s10, s{S_T}"); c(f"s_lshl_b32 s{S_T}, s{S_WAVE}, 6"); c(f"s_or_b32 s10, s10, s{S_T}")
    c("v_and_b32 v5, 15, v0"); c(f"v_lshlrev_b32 v{V_WO}, 11, v6"); c(f"v_lshl_or_b32 v{V_WO}, v5, 2, v{V_WO}"); c(f"v_add_u32 v{V_WO}, s10, v{V_WO}")
    c("s_lshl_b32 s10, s8, 14"); c(f"s_lshl_b32 s{S_T}, s{S_S}, 12"); c(f"s_or_b32 s10, s10, s{S_T}"); c(f"s_lshl_b32 s{S_T}, s{S_WAVE}, 10"); c(f"s_or_b32 s10, s10, s{S_T}"); c(f"s_add_u32 s10, s10, {WS_P2}")
    c(f"v_lshlrev_b32 v{V_P2S}, 6, v5"); c(f"v_lshl_or_b32 v{V_P2S}, v6, 4, v{V_P2S}"); c(f"v_add_u32 v{V_P2S}, s10, v{V_P2S}")
    c(f"s_lshl_b32 s{S_T}, s{S_HEAD}, 2"); c(f"s_or_b32 s{S_T}, s{S_T}, s{S_S}")
    c(f"s_lshl_b32 s10, s{S_T}, 7"); c(f"s_lshl_b32 s8, s{S_BR}, 19"); c("s_or_b32 s10, s10, s8"); c(f"s_add_u32 s10, s10, {WS_P2}")
    c("v_and_b32 v5, 7, v0"); c(f"v_lshlrev_b32 v{V_P2L}, 14, v7"); c(f"v_lshl_or_b32 v{V_P2L}, v5, 4, v{V_P2L}"); c(f"v_add_u32 v{V_P2L}, s10, v{V_P2L}")
    c(f"s_lshl_b32 s10, s{S_T}, 3"); c(f"s_lshl_b32 s8, s{S_BR}, 10"); c("s_or_b32 s10, s10, s8")
    c("v_and_b32 v5, 1, v0"); c(f"v_lshlrev_b32 v{V_OUT}, 13, v5"); c(f"v_lshl_or_b32 v{V_OUT}, v6, 11, v{V_OUT}"); c("v_and_b32 v5, 6, v0"); c(f"v_or_b32 v{V_OUT}, v{V_OUT}, v5"); c(f"v_add_u32 v{V_OUT}, s10, v{V_OUT}")
    c(["L_chk_q:"] + check_block([QP + 4 * i for i in range(8)], DT, "L_retry_q") + ["L_ok_q:"] + stamp(), need="QP7")
    tail_code += ["L_retry_q:", f"s_cmp_eq_u32 s{S_CNT}, 0", "s_cbranch_scc1 L_ok_q", f"s_sub_u32 s{S_CNT}, s{S_CNT}, 1", "s_sleep 4"] + qpoll_loads() + ["s_waitcnt vmcnt(0)", "s_branch L_chk_q"]
    for i in range(16):
        c(f"v_perm_b32 v{QA+i}, v{QP+2*i+1}, v{QP+2*i}, s{S_SELHI}", mark="q_packed" if i == 15 else None)
    def qk(br, T):
        q = QB if br else QA
        sb = (SB if br else SA) + 8 * T
        nm = f"K{'B' if br else 'A'}{T}_"
        for Tp in range(4):
            for L in range(2):
                i = 2 * Tp + L
                kreg = ar(32 * T + 4 * i) if br else vr(RING + 64 + 32 * T + 4 * i)
                cc = "0" if L == 0 else vr(DT + 4 * Tp)
                c(f"v_mfma_f32_16x16x32_bf16 {vr(DT+4*Tp)}, {kreg}, {vr(q+4*L)}, {cc}", need=nm + str(i), mark=(f"qkA{T}" if (not br and i == 7) else None))
        for Tp in range(4):
            for u in range(2):
                d = DT + 4 * Tp + 2 * u
                c(f"v_add_f32_dpp v{sb+2*Tp+u}, v{d+1}, v{d} row_shl:4 row_mask:0xf bank_mask:0xf bound_ctrl:0")
        mreg = 5 if br else 4
        for i in range(4):
            if T == 0 and i == 0: c(f"v_max_f32 v{mreg}, v{sb}, v{sb+1}")
            else: c(f"v_max3_f32 v{mreg}, v{sb+2*i}, v{sb+2*i+1}, v{mreg}")
    for T in range(8): qk(1, T)
    for T in range(2): qk(0, T)
    c("v_mov_b32 v7, v4"); c("v_mov_b32 v10, v5")
    c("v_permlane16_swap_b32 v7, v4"); c("v_permlane16_swap_b32 v10, v5")
    c("v_max_f32 v4, v4, v7"); c("v_max_f32 v5, v5, v10")
    c("v_mov_b32 v7, v4"); c("v_mov_b32 v10, v5")
    c("v_permlane32_swap_b32 v7, v4"); c("v_permlane32_swap_b32 v10, v5")
    c("v_max_f32 v4, v4, v7"); c("v_max_f32 v5, v5, v10")
    c("v_and_b32 v11, 3, v0"); c("v_lshlrev_b32 v11, 4, v11"); c(f"v_add_u32 v11, {L_M}, v11")
    c(f"s_lshl_b32 s8, s{S_WAVE}, 2"); c("v_add_u32 v7, s8, v11")
    c(["s_mov_b64 exec, 15", "ds_write2_b32 v7, v4, v5 offset0:0 offset1:16", "s_mov_b64 exec, -1", "s_waitcnt lgkmcnt(0)", "s_barrier",
       f"ds_read_b128 {vr(DT)}, v11", f"ds_read_b128 {vr(DT+4)}, v11 offset:64"] + stamp())
    for i in range(4): c(f"v_mov_b32 v{DT+8+i}, 0x3f803f80")
    c("s_waitcnt lgkmcnt(0)")
    for br in range(2):
        d = DT + 4 * br; m = 4 + br
        c(f"v_max3_f32 v{m}, v{d}, v{d+1}, v{d+2}"); c(f"v_max_f32 v{m}, v{m}, v{d+3}"); c(f"v_mul_f32 v{m}, s{S_C}, v{m}")
    for br, nT in ((0, 2), (1, 8)):
        base = SB if br else SA
        for T in range(nT):
            sb = base + 8 * T
            for t in range(8): c(f"v_fma_f32 v{sb+t}, v{sb+t}, s{S_C}, -v{4+br}")
            for t in range(8): c(f"v_exp_f32 v{sb+t}, v{sb+t}")
            for p in range(4): c(f"v_cvt_pk_bf16_f32 v{base+4*T+p}, v{sb+2*p}, v{sb+2*p+1}")
        lreg = LB if br else LA
        for T in range(nT):
            cc = "0" if T == 0 else vr(lreg)
            c(f"v_mfma_f32_16x16x32_bf16 {vr(lreg)}, {vr(DT+8)}, {vr(base+4*T)}, {cc}")
    c("v_and_b32 v10, 3, v0"); c(f"v_mul_u32_u24 v10, {OH}, v10"); c("v_lshl_add_u32 v10, v6, 7, v10"); c(f"s_mul_i32 s8, s{S_WAVE}, {OW}"); c("v_add_u32 v10, s8, v10")
    c(["s_mov_b64 exec, 15", f"ds_write2_b32 v7, v{LA}, v{LB} offset0:32 offset1:48", "s_mov_b64 exec, -1"])
    c(f"s_mul_i32 s8, s{S_WAVE}, {OH}"); c("v_lshl_add_u32 v11, v0, 4, s8")
    c(f"s_lshl_b32 s8, s{S_KVH}, 2"); c(f"s_or_b32 s8, s8, s{S_WAVE}"); c("s_lshl_b32 s8, s8, 3"); c(f"s_or_b32 s8, s8, s{S_B}"); c("s_lshl_b32 s8, s8, 2"); c(f"s_or_b32 s8, s8, s{S_S}")
    c("s_lshl_b32 s8, s8, 9"); c(f"s_add_u32 s8, s8, {WS_O1}"); c("v_lshl_add_u32 v7, v0, 4, s8")
    c([f"s_mov_b32 s{S_MASK}, 0x000f000f", f"s_mov_b32 s{S_MASK+1}, 0x000f000f"] + stamp())
    def pv(n):
        br, T = (0, n) if n < 2 else (1, n - 2)
        vb = RING + 32 * (n % 4)
        P = (SB if br else SA) + 4 * T
        for p in range(4):
            for e in range(8):
                sel = S_SELHI if e & 1 else S_SELLO
                c(f"v_perm_b32 v{VT+4*e+p}, v{vb+4*(2*p+1)+e//2}, v{vb+4*(2*p)+e//2}, s{sel}", need=f"V{n}_{2*p+1}", mark=(f"perm{n}_{p}" if e == 7 else None))
        for e in range(8):
            cc = "0" if T == 0 else vr(OACC + 4 * e)
            c(f"v_mfma_f32_16x16x32_bf16 {vr(OACC+4*e)}, {vr(VT+4*e)}, {vr(P)}, {cc}")
    def combine(br):
        lo = L_OB if br else L_OA
        blk = [f"s_mov_b64 exec, s[{S_MASK}:{S_MASK+1}]"]
        for e in range(8): blk.append(f"ds_write_b128 v10, {vr(OACC+4*e)} offset:{lo+16*e}")
        blk += ["s_mov_b64 exec, 0xffffffff" if False else "s_mov_b32 exec_lo, -1", "s_mov_b32 exec_hi, 0", "s_waitcnt lgkmcnt(0)", "s_barrier"]
        for w in range(4): blk.append(f"ds_read_b128 {vr(VT+4*w)}, v11 offset:{lo+OW*w}")
        blk.append("s_waitcnt lgkmcnt(0)")
        for i in range(4): blk.append(f"v_add_f32 v{VT+i}, v{VT+i}, v{VT+4+i}")
        for i in range(4): blk.append(f"v_add_f32 v{VT+8+i}, v{VT+8+i}, v{VT+12+i}")
        for i in range(4): blk.append(f"v_add_f32 v{VT+i}, v{VT+i}, v{VT+8+i}")
        for i in range(4): blk.append(f"v_perm_b32 v{VT+16+i}, v{VT+i}, v{V_TAG}, s{S_INS+i}")
        so = f"s{S_C80000}" if br else "0"
        blk += [f"buffer_store_dwordx4 {vr(VT+16)}, v7, {srd(SRD_WS)}, {so} offen sc1", "s_mov_b64 exec, -1"]
        return blk
    pv(0); pv(1)
    c(combine(0))
    blk = [f"s_cmp_lg_u32 s{S_WAVE}, 1", "s_cbranch_scc1 L_mlpub_done", "s_mov_b64 exec, 0xff",
           "v_lshlrev_b32 v36, 4, v0", f"ds_read_b128 {vr(40)}, v36 offset:{L_M}", f"ds_read_b128 {vr(44)}, v36 offset:{L_L}",
           f"s_lshl_b32 s8, s{S_KVH}, 11", f"s_lshl_b32 s10, s{S_B}, 6", "s_or_b32 s8, s8, s10", f"s_lshl_b32 s10, s{S_S}, 4", "s_or_b32 s8, s8, s10", f"s_add_u32 s8, s8, {WS_ML}",
           "v_and_b32 v37, 3, v0", "v_lshlrev_b32 v37, 9, v37", "v_lshrrev_b32 v38, 2, v0", "v_lshl_or_b32 v37, v38, 14, v37", "v_add_u32 v37, s8, v37",
           "s_waitcnt lgkmcnt(0)",
           "v_max3_f32 v40, v40, v41, v42", "v_max_f32 v40, v40, v43", f"v_mul_f32 v40, s{S_C}, v40",
           "v_add_f32 v44, v44, v45", "v_add_f32 v46, v46, v47", "v_add_f32 v42, v44, v46",
           "v_lshlrev_b32 v41, 8, v40",
           f"v_perm_b32 v40, v40, v{V_TAG}, s{S_INS}", f"v_perm_b32 v41, v41, v{V_TAG}, s{S_INS+1}", f"v_perm_b32 v42, v42, v{V_TAG}, s{S_INS+2}", f"v_perm_b32 v43, v42, v{V_TAG}, s{S_INS+3}",
           f"buffer_store_dwordx4 {vr(40)}, v37, {srd(SRD_WS)}, 0 offen sc1", "s_mov_b64 exec, -1", "s_nop 1", "L_mlpub_done:"] + stamp()
    c(blk, mark="pubA")
    mlt = mlpoll_at // 8 + 1
    for n in range(2, 10):
        pv(n)
        if n == mlt:
            c(["L_chk_ml:"] + check_block([MLR + 4 * i for i in range(4)], 4, "L_retry_ml") + ["L_ok_ml:"], need="ML3")
            tail_code += ["L_retry_ml:", f"s_cmp_eq_u32 s{S_CNT}, 0", "s_cbranch_scc1 L_ok_ml", f"s_sub_u32 s{S_CNT}, s{S_CNT}, 1", "s_sleep 4"] + ml_loads() + ["s_waitcnt vmcnt(0)", "s_branch L_chk_ml"]
            c("s_mov_b32 s8, 0x07060501")
            for s in range(4): c(f"v_perm_b32 v{MLR+4*s}, v{MLR+4*s}, v{MLR+4*s+1}, s8")
            c(f"v_max3_f32 v4, v{MLR}, v{MLR+4}, v{MLR+8}"); c(f"v_max_f32 v4, v4, v{MLR+12}")
            for s in range(4): c(f"v_sub_f32 v{MLR+4*s}, v{MLR+4*s}, v4")
            for s in range(4): c(f"v_exp_f32 v{MLR+4*s}, v{MLR+4*s}")
            c(f"v_mul_f32 v4, v{MLR}, v{MLR+2}")
            for s in range(1, 4): c(f"v_fmac_f32 v4, v{MLR+4*s}, v{MLR+4*s+2}")
            c("v_rcp_f32 v4, v4")
            for s in range(4): c(f"v_mul_f32 v{MLR+4*s}, v{MLR+4*s}, v4")
            c("v_lshrrev_b32 v4, 5, v0"); c("v_mul_u32_u24 v4, 272, v4"); c("v_and_b32 v5, 31, v0"); c("v_lshl_add_u32 v4, v5, 3, v4")
            c(f"s_mul_i32 s8, s{S_WAVE}, 544"); c(f"s_add_u32 s8, s8, {L_O}"); c("v_add_u32 v4, s8, v4")
            c("v_and_b32 v5, 7, v0"); c("v_mul_u32_u24 v5, 272, v5"); c("v_lshrrev_b32 v6, 4, v0"); c("v_lshl_add_u32 v5, v6, 4, v5")
    c(stamp() + combine(1) + stamp())
    S.run()
    O1R = 64
    WT = 96
    def o1_loads(): return [f"buffer_load_dwordx4 {vr(O1R+4*s)}, v{V_O1C}, {srd(SRD_WS)}, 0 offen offset:{512*s} sc1" for s in range(4)]
    O.extend(o1_loads())
    A("s_waitcnt vmcnt(4)")
    for kc in range(4):
        for p in range(4):
            for e in range(2):
                A(f"v_perm_b32 v{WT+16*e+4*kc+p}, v{WOD+8*kc+2*p+1}, v{WOD+8*kc+2*p}, s{S_SELHI if e else S_SELLO}")
    A(f"s_mov_b32 s{S_MASK}, 0"); A(f"s_mov_b32 s{S_MASK+1}, -1")
    A("L_w_o1:")
    A("s_waitcnt vmcnt(0)")
    O.extend(check_block([O1R + 4 * s for s in range(4)], 80, "L_retry_o1"))
    A("L_ok_o1:")
    tail_code += ["L_retry_o1:", f"s_cmp_eq_u32 s{S_CNT}, 0", "s_cbranch_scc1 L_ok_o1", f"s_sub_u32 s{S_CNT}, s{S_CNT}, 1", "s_sleep 1"] + o1_loads() + ["s_branch L_w_o1"]
    O.extend(stamp())
    for i in range(4): A(f"v_mul_f32 v{80+i}, v{MLR}, v{O1R+i}")
    for s in range(1, 4):
        for i in range(4): A(f"v_fmac_f32 v{80+i}, v{MLR+4*s}, v{O1R+4*s+i}")
    A("v_cvt_pk_bf16_f32 v84, v80, v81"); A("v_cvt_pk_bf16_f32 v85, v82, v83")
    A("ds_write_b64 v4, v[84:85]"); A("s_waitcnt lgkmcnt(0)"); A("s_barrier")
    for kc in range(4): A(f"ds_read_b128 {vr(16+4*kc)}, v5 offset:{L_O+64*kc}")
    A("s_waitcnt lgkmcnt(0)")
    for kc in range(4):
        for e in range(2):
            cc = "0" if kc == 0 else vr(32 + 4 * e)
            A(f"v_mfma_f32_16x16x32_bf16 {vr(32+4*e)}, {vr(16+4*kc)}, {vr(WT+16*e+4*kc)}, {cc}")
    for i in range(4): A(f"v_cndmask_b32 v{40+i}, v{32+i}, v{36+i}, s[{S_MASK}:{S_MASK+1}]")
    for i in range(4): A(f"v_perm_b32 v{40+i}, v{40+i}, v{V_TAG}, s{S_INS+i}")
    A(f"buffer_store_dwordx4 {vr(40)}, v{V_P2S}, {srd(SRD_WS)}, 0 offen sc1")
    O.extend(stamp())
    A(f"s_cmp_lg_u32 s{S_WAVE}, 0"); A("s_cbranch_scc1 L_fin")
    P2R = 64
    def p2_loads(): return [f"buffer_load_dwordx4 {vr(P2R+4*i)}, v{V_P2L}, {srd(SRD_WS)}, {so} offen sc1" for i, so in enumerate(("0", f"s{S_C20000}", f"s{S_C40000}", f"s{S_C60000}"))]
    A("L_p2:")
    O.extend(p2_loads())
    A("s_waitcnt vmcnt(0)")
    O.extend(check_block([P2R + 4 * i for i in range(4)], 80, "L_retry_p2"))
    A("L_ok_p2:")
    tail_code += ["L_retry_p2:", f"s_cmp_eq_u32 s{S_CNT}, 0", "s_cbranch_scc1 L_ok_p2", f"s_sub_u32 s{S_CNT}, s{S_CNT}, 1", "s_sleep 1", "s_branch L_p2"]
    for i in range(4): A(f"v_add_f32 v{P2R+i}, v{P2R+i}, v{P2R+4+i}")
    for i in range(4): A(f"v_add_f32 v{P2R+8+i}, v{P2R+8+i}, v{P2R+12+i}")
    for i in range(4): A(f"v_add_f32 v{P2R+i}, v{P2R+i}, v{P2R+8+i}")
    A(f"v_permlane32_swap_b32 v{P2R}, v{P2R+2}"); A(f"v_permlane32_swap_b32 v{P2R+1}, v{P2R+3}")
    A(f"v_add_f32 v{P2R}, v{P2R}, v{P2R+2}"); A(f"v_add_f32 v{P2R+1}, v{P2R+1}, v{P2R+3}")
    A(f"v_permlane16_swap_b32 v{P2R}, v{P2R+1}")
    A(f"v_add_f32 v{P2R}, v{P2R}, v{P2R+1}")
    A(f"v_add_f32_dpp v{P2R+1}, v{P2R}, v{P2R} row_ror:8 row_mask:0xf bank_mask:0xf")
    A(f"v_cvt_pk_bf16_f32 v{P2R+1}, v{P2R+1}, v{P2R+1}")
    A(f"buffer_store_short v{P2R+1}, v{V_OUT}, {srd(SRD_OUT)}, 0 offen")
    A("s_cmp_lg_u32 s2, 0"); A("s_cbranch_scc1 L_fin")
    A("v_mov_b32 v4, 0"); A("s_mov_b64 exec, 1")
    A(f"buffer_store_dword v{V_TAG}, v4, {srd(SRD_WS)}, 0 offen offset:{WS_E}")
    A("L_fin:")
    if dbg:
        A("s_memrealtime s[98:99]"); A("s_mov_b32 s94, 256"); A("s_mov_b32 s95, 0x20000"); A("s_waitcnt lgkmcnt(0)")
        A("s_not_b32 s96, s96"); A("s_mov_b64 exec, 1"); A("v_mov_b32 v4, 0"); A("v_mov_b32 v16, s96"); A("v_mov_b32 v17, s98")
        A("buffer_atomic_umax v16, v4, s[92:95], 0 offen"); A("buffer_atomic_umax v17, v4, s[92:95], 0 offen offset:4")
    if stamps:
        O.extend(stamp())
        A("s_waitcnt lgkmcnt(0)")
        A("s_lshl_b32 s8, s2, 4"); A(f"s_add_u32 s8, s8, s{S_WAVE}"); A("s_lshl_b32 s8, s8, 7"); A(f"s_add_u32 s8, s8, {64<<20}")
        A("s_mov_b64 exec, 1"); A("v_mov_b32 v4, 0")
        for i in range(nst[0]):
            A(f"v_mov_b32 v16, s{S_STAMP+2*i}"); A(f"v_mov_b32 v17, s{S_STAMP+2*i+1}")
            A(f"buffer_store_dwordx2 v[16:17], v4, {srd(SRD_WS)}, s8 offen offset:{8*i}")
            A("s_nop 1")
    A("L_end:"); A("s_endpgm")
    O.extend(tail_code)
    A("L_code_end:")
    body = finalize(O)
    hdr = HEADER + f"; @launch grid=(256,1,1) block=(256,1,1) lds={LDS_BYTES}\n"
    hdr += '.amdgcn_target "amdgcn-amd-amdhsa--gfx950"\n.text\n' + f".globl {NAME}_kernel\n.p2align 8\n.type {NAME}_kernel,@function\n"
    ftr = f"""
.section .rodata,"a"
.p2align 6
.amdhsa_kernel {NAME}_kernel
  .amdhsa_next_free_vgpr 512
  .amdhsa_next_free_sgpr 102
  .amdhsa_accum_offset 256
  .amdhsa_group_segment_fixed_size 0
  .amdhsa_kernarg_size 104
  .amdhsa_user_sgpr_count 2
  .amdhsa_user_sgpr_kernarg_segment_ptr 1
  .amdhsa_system_sgpr_workgroup_id_x 1
.end_amdhsa_kernel
"""
    return hdr + "\n".join(body) + ftr, nst[0]

if __name__ == "__main__":
    out = sys.argv[1]
    kw = {}
    for a in sys.argv[2:]:
        k, v = a.split("=")
        kw[k] = eval(v)
    txt, n = gen(**kw)
    open(out, "w").write(txt)
    print(out, "stamps:", n, "lines:", txt.count("\n"))
```

```python
import sys, struct
from asmlib import finalize
NAME = "concat_heads__sliding_block_cached__gqa_block_cached__decode"
HEADER = open("cdna_kernels/" + NAME + ".s.ref").read().split("; Override launch geometry")[0]

def f32(x): return struct.unpack("<I", struct.pack("<f", x))[0]

WS_E, WS_Q, WS_ML, WS_O1, WS_P2 = 0, 0x10000, 0x60000, 0x80000, 0x200000
WS_BYTES = 285229056
L_QP, L_M, L_L, L_OA, L_OB, L_O = 0x0, 0x2000, 0x2080, 0x2100, 0x4200, 0x6300
OW, OH = 2112, 528
LDS_BYTES = 0x7000
S_WG, S_WAVE = 2, 3
SRD_KB, SRD_KA, SRD_VA, SRD_VB, SRD_WQ, SRD_X, SRD_WO, SRD_WS, SRD_OUT = 32, 36, 40, 44, 48, 52, 56, 60, 64
S_BR, S_KVH, S_B, S_S, S_HEAD = 5, 9, 12, 11, 13
S_SOFF = 14
S_T = 15
S_T2 = 4
S_SELLO, S_SELHI = 16, 17
S_TAG = 18
S_INS = 22
S_C = 26
S_CNT = 27
S_C20000, S_C40000, S_C60000, S_C80000 = 28, 29, 30, 31
S_MASK = 68
S_PC = 70
S_STAMP = 72
V_L, V_K, V_V, V_TAG = 0, 1, 2, 3
V_T0 = 4
QA, QB, DT, SA, SB, OACC, RING, VT = 16, 24, 32, 48, 64, 96, 128, 16
LA, LB = 56, 60
def srd(n): return f"s[{n}:{n+3}]"
def vr(n, k=4): return f"v[{n}:{n+k-1}]"
def ar(n, k=4): return f"a[{n}:{n+k-1}]"

class Sched:
    def __init__(self, out, F, CAP):
        self.out, self.F, self.CAP = out, F, CAP
        self.issued = 0
        self.landed = 0
        self.seq = {}
        self.marks = set()
        self.comp = []
        self.loads = []
    def c(self, lines, need=(), mark=None):
        if isinstance(lines, str): lines = [lines]
        if isinstance(need, str): need = (need,)
        self.comp.append((lines, tuple(need), mark))
    def ld(self, text, name=None, pre=(), after=None, F=None):
        self.loads.append((text, name, tuple(pre), after, F))
    def wait_landed(self, n):
        if n > self.landed:
            k = self.issued - n
            assert k >= 0
            self.out.append(f"s_waitcnt vmcnt({min(k, 63)})")
            self.landed = max(n, self.issued - min(k, 63))
    def ready(self, item):
        return all(nm in self.seq and self.seq[nm] <= self.landed for nm in item[1])
    def emit_comp(self, force=False):
        lines, need, mark = self.comp.pop(0)
        for nm in need:
            assert nm in self.seq, f"compute needs load {nm} not issued yet"
            self.wait_landed(self.seq[nm])
        self.out.extend(lines)
        if mark: self.marks.add(mark)
        return len(lines)
    def run(self):
        for idx, (text, name, pre, after, F) in enumerate(self.loads):
            while after and after not in self.marks:
                self.emit_comp()
            F = self.F if F is None else F
            self.out.extend(pre)
            self.wait_landed(max(0, self.issued - (F - 1)))
            self.out.append(text)
            self.issued += 1
            if name: self.seq[name] = self.issued
            n = 0
            if idx + 1 < len(self.loads):
                Fn = self.loads[idx + 1][4]
                Fn = self.F if Fn is None else Fn
                if self.issued - self.landed < Fn: continue
            while self.comp and n < self.CAP and self.ready(self.comp[0]):
                n += self.emit_comp()
        self.loads = []
        while self.comp: self.emit_comp()

def check_block(regs, tmp, retry):
    o = []; acc = []
    t = tmp
    assert len(regs) % 2 == 0
    for a, b in zip(regs[0::2], regs[1::2]):
        for k in range(4):
            o.append(f"v_bitop3_b32 v{t}, v{a+k}, v{b+k}, s{S_TAG+k} bitop3:0x7e"); acc.append(t); t += 1
            if len(acc) == 3:
                o.append(f"v_or3_b32 v{acc[0]}, v{acc[0]}, v{acc[1]}, v{acc[2]}"); acc = [acc[0]]; t = acc[0] + 1
    if len(acc) == 2: o.append(f"v_or_b32 v{acc[0]}, v{acc[0]}, v{acc[1]}")
    o.append(f"v_and_b32 v{acc[0]}, 0xff, v{acc[0]}")
    o.append(f"v_cmp_ne_u32 vcc, 0, v{acc[0]}")
    o.append(f"s_cbranch_vccnz {retry}")
    return o

def gen(F=6, CAP=24, stamps=False, qpoll_at=44, wq_at=6, Fwo=40, Fend=None, pol="nt", wpol="nt", mlpoll_at=52, dbg=False):
    O = []; A = O.append
    tail_code = []
    nst = [0]
    def stamp():
        if not (stamps or dbg): return []
        i = nst[0]; nst[0] += 1
        return [f"s_memrealtime s[{S_STAMP+2*i}:{S_STAMP+2*i+1}]"]
    A(f"{NAME}_kernel:")
    A("s_cmp_ge_u32 s2, 256"); A("s_cbranch_scc1 L_end")
    A(f"s_load_dwordx2 s[{SRD_KB}:{SRD_KB+1}], s[0:1], 48")
    A(f"s_load_dwordx2 s[{SRD_WS}:{SRD_WS+1}], s[0:1], 96")
    A(f"s_lshr_b32 s{S_BR}, s2, 7"); A(f"s_mul_i32 s6, s{S_BR}, 40")
    A(f"s_load_dwordx2 s[{SRD_X}:{SRD_X+1}], s[0:1], s6")
    A(f"s_load_dwordx2 s[{SRD_WQ}:{SRD_WQ+1}], s[0:1], s6 offset:24")
    A(f"s_load_dwordx2 s[{SRD_WO}:{SRD_WO+1}], s[0:1], s6 offset:32")
    A(f"s_load_dwordx2 s[{SRD_KA}:{SRD_KA+1}], s[0:1], 8")
    A(f"s_load_dwordx2 s[{SRD_VA}:{SRD_VA+1}], s[0:1], 16")
    A(f"s_load_dwordx2 s[{SRD_VB}:{SRD_VB+1}], s[0:1], 56")
    A(f"s_load_dwordx2 s[{SRD_OUT}:{SRD_OUT+1}], s[0:1], 80")
    O.extend(stamp())
    if dbg:
        A("s_load_dwordx2 s[96:97], s[0:1], 88")
    A("v_lshrrev_b32 v4, 6, v0"); A("v_and_b32 v0, 63, v0"); A(f"v_readfirstlane_b32 s{S_WAVE}, v4")
    A("v_bfe_u32 v5, v0, 1, 1"); A("v_bfe_u32 v6, v0, 2, 2"); A("v_lshlrev_b32 v5, 10, v5"); A("v_lshl_or_b32 v5, v6, 8, v5")
    A("v_lshrrev_b32 v6, 4, v0"); A("v_lshl_or_b32 v5, v6, 5, v5"); A("v_and_b32 v7, 1, v0"); A("v_lshl_or_b32 v5, v7, 4, v5")
    A(f"s_lshr_b32 s{S_B}, s2, 5"); A(f"s_lshl_b32 s8, s{S_B}, 23"); A(f"s_and_b32 s{S_KVH}, s2, 7"); A(f"s_lshl_b32 s10, s{S_KVH}, 20"); A("s_or_b32 s8, s8, s10")
    A(f"s_bfe_u32 s{S_S}, s2, 0x20003"); A(f"s_lshl_b32 s10, s{S_S}, 14"); A("s_or_b32 s8, s8, s10"); A(f"s_lshl_b32 s10, s{S_WAVE}, 12"); A("s_or_b32 s8, s8, s10")
    A(f"s_mov_b32 s{SRD_KB+2}, 0x4000000"); A(f"s_mov_b32 s{SRD_KB+3}, 0x20000")
    A(f"v_add_u32 v{V_K}, s8, v5"); A(f"v_lshl_add_u32 v{V_V}, v0, 4, s8")
    A("s_waitcnt lgkmcnt(0)")

    S = Sched(O, F, CAP)
    KOFF = [0, 128, 2048, 2176]
    kl = []
    for T in range(8):
        for i in range(8):
            m = 2 * T + i // 4
            pre = [f"s_mov_b32 s{S_SOFF}, {m*65536}"] if (i % 4 == 0 and m) else []
            so = f"s{S_SOFF}" if m else "0"
            kl.append(dict(text=f"buffer_load_dwordx4 {ar(32*T+4*i)}, v{V_K}, {srd(SRD_KB)}, {so} offen offset:{KOFF[i%4]} {pol}", name=f"KB{T}_{i}", pre=pre))
    for T in range(2):
        for i in range(8):
            m = 2 * T + i // 4
            pre = [f"s_mov_b32 s{S_SOFF}, {3072*256 + m*65536}"] if i % 4 == 0 else []
            kl.append(dict(text=f"buffer_load_dwordx4 {vr(RING+64+32*T+4*i)}, v{V_K}, {srd(SRD_KA)}, s{S_SOFF} offen offset:{KOFF[i%4]} {pol}", name=f"KA{T}_{i}", pre=pre, after="setup"))
    WQD, XD, WQT, QD = 128, 160, 64, 96
    V_WQ, V_X = 8, 9
    wql = []
    for G in range(2):
        wql.append(dict(text=f"buffer_load_dwordx4 {vr(XD+4*G)}, v{V_X}, {srd(SRD_X)}, 0 offen offset:{128*G}", name=f"X{G}", after="setup", F=64))
        for t in range(8):
            wql.append(dict(text=f"buffer_load_dwordx2 {vr(WQD+16*G+2*t,2)}, v{V_WQ}, {srd(SRD_WQ)}, s{S_T2} offen {wpol}", name=f"WQ{G}_{t}",
                            pre=[f"s_mov_b32 s{S_T2}, {(64*G+t)*8192}"], F=64))
    wql.append(dict(text=f"global_load_dword v168, v10, s[{S_PC}:{S_PC+1}]", F=64))
    V_QP = 11
    QP = 128
    def qpoll_loads():
        r = []
        for br in range(2):
            for Lh in range(4):
                so = f"s{S_C20000}" if br else "0"
                r.append(f"buffer_load_dwordx4 {vr(QP+16*br+4*Lh)}, v{V_QP}, {srd(SRD_WS)}, {so} offen offset:{(Lh//2)*256+(Lh%2)*16} sc1")
        return r
    qpl = [dict(text=t, name=f"QP{i}", after="qproj_done", F=F+8) for i, t in enumerate(qpoll_loads())]
    stream = kl[:wq_at] + wql + kl[wq_at:qpoll_at] + qpl + kl[qpoll_at:]
    vl = []
    for n in range(10):
        for t in range(8):
            br, T = (0, n) if n < 2 else (1, n - 2)
            m = 2 * T + t // 4
            off = m * 65536 + (3072 * 256 if br == 0 else 0)
            pre = [f"s_mov_b32 s{S_SOFF}, {off}"] if t % 4 == 0 else []
            after = {0: "q_packed", 1: "q_packed", 2: "qkA0", 3: "qkA1"}.get(n, f"perm{n-4}_{t//2}")
            vl.append(dict(text=f"buffer_load_dwordx4 {vr(RING+32*(n%4)+4*t)}, v{V_V}, {srd(SRD_VB if br else SRD_VA)}, s{S_SOFF} offen offset:{(t%4)*1024} {pol}",
                           name=f"V{n}_{t}", pre=pre, after=after))
    if Fend:
        for d in vl[-Fend[0]:]: d["F"] = Fend[1]
    MLR = 48
    V_ML, V_O1C, V_WO, V_P2S, V_P2L, V_OUT = 12, 13, 14, 15, 8, 9
    def ml_loads():
        return [f"buffer_load_dwordx4 {vr(MLR+4*s)}, v{V_ML}, {srd(SRD_WS)}, 0 offen offset:{16*s} sc1" for s in range(4)]
    mll = [dict(text=t, name=f"ML{i}", after="pubA", F=F+4) for i, t in enumerate(ml_loads())]
    mll.append(dict(text=f"buffer_load_dword a0, v{V_P2L}, {srd(SRD_WS)}, 0 offen sc1", F=F+5))
    mll.append(dict(text=f"buffer_load_ushort a1, v{V_OUT}, {srd(SRD_OUT)}, 0 offen", F=F+6))
    WOD = RING + 64
    wol = []
    for kc in range(4):
        for t4 in range(4):
            for th in range(2):
                t = th * 4 + t4
                pre = [f"s_mov_b32 s{S_SOFF}, {(32*kc+8*t4)*1024}"] if th == 0 else []
                wol.append(dict(text=f"buffer_load_dword v{WOD+8*kc+t}, v{V_WO}, {srd(SRD_WO)}, s{S_SOFF} offen offset:{th*1024} {wpol}", name=f"WO{kc}_{t}",
                                pre=pre, after="perm6_3", F=Fwo))
    stream += vl[:mlpoll_at] + mll + vl[mlpoll_at:] + wol
    for d in stream: S.ld(**d)

    c = S.c
    for n, sz in ((SRD_KA, 0x4000000), (SRD_VA, 0x4000000), (SRD_VB, 0x4000000), (SRD_WQ, 0x400000), (SRD_X, 8192), (SRD_WO, 0x400000), (SRD_WS, WS_BYTES), (SRD_OUT, 16384)):
        c(f"s_mov_b32 s{n+2}, {sz}"); c(f"s_mov_b32 s{n+3}, 0x20000")
    c(f"s_load_dword s{S_TAG}, s[{SRD_WS}:{SRD_WS+1}], {WS_E}")
    c("v_bfe_u32 v7, v0, 3, 3")
    c("v_and_b32 v5, 7, v0")
    c(f"s_bfe_u32 s{S_T}, s2, 0x40003")
    c(f"s_lshl_b32 s10, s{S_T}, 6"); c(f"s_lshl_b32 s8, s{S_KVH}, 10"); c("s_or_b32 s10, s10, s8"); c(f"s_lshl_b32 s8, s{S_WAVE}, 20"); c("s_or_b32 s10, s10, s8")
    c(f"v_lshlrev_b32 v{V_WQ}, 16, v7"); c(f"v_lshl_or_b32 v{V_WQ}, v5, 3, v{V_WQ}"); c(f"v_add_u32 v{V_WQ}, s10, v{V_WQ}")
    c(f"s_lshl_b32 s8, s{S_WAVE}, 8")
    c(f"v_lshlrev_b32 v{V_X}, 10, v5"); c(f"v_lshl_or_b32 v{V_X}, v7, 4, v{V_X}"); c(f"v_add_u32 v{V_X}, s8, v{V_X}")
    c([f"s_getpc_b64 s[{S_PC}:{S_PC+1}]", "L_pc:"])
    c("v_lshlrev_b32 v10, 6, v0"); c(f"s_lshl_b32 s8, s{S_WAVE}, 12"); c("v_add_u32 v10, s8, v10")
    c("v_min_u32 v10, L_code_end-L_pc-4, v10", mark="setup")
    c(f"s_mov_b32 s{S_SELLO}, 0x05040100"); c(f"s_mov_b32 s{S_SELHI}, 0x07060302")
    for k in range(4): c(f"s_mov_b32 s{S_INS+k}, {0x07060500 + k:#x}")
    c(f"s_mov_b32 s{S_C}, {f32((128 ** -0.5) * 1.4426950408889634):#x}")
    c(f"s_mov_b32 s{S_CNT}, 40000")
    c(f"s_mov_b32 s{S_C20000}, 0x20000"); c(f"s_mov_b32 s{S_C40000}, 0x40000"); c(f"s_mov_b32 s{S_C60000}, 0x60000"); c(f"s_mov_b32 s{S_C80000}, 0x80000")
    c(f"s_bfe_u32 s8, s2, 0x20005"); c(f"s_lshl_b32 s{S_HEAD}, s{S_KVH}, 2"); c(f"s_or_b32 s{S_HEAD}, s{S_HEAD}, s8")
    c(f"s_lshl_b32 s8, s{S_B}, 3"); c(f"s_or_b32 s8, s8, s{S_KVH}"); c("s_lshl_b32 s8, s8, 11"); c(f"s_add_u32 s8, s8, {WS_Q}")
    c("v_and_b32 v4, 3, v0"); c(f"v_lshlrev_b32 v{V_QP}, 9, v4"); c(f"v_lshl_or_b32 v{V_QP}, v6, 6, v{V_QP}")
    c("v_bfe_u32 v4, v0, 2, 1"); c(f"v_lshl_or_b32 v{V_QP}, v4, 5, v{V_QP}"); c(f"v_add_u32 v{V_QP}, s8, v{V_QP}")
    c("v_bfe_u32 v4, v0, 3, 1"); c("v_lshlrev_b32 v12, 10, v4"); c("v_bfe_u32 v4, v0, 4, 1"); c("v_lshl_or_b32 v12, v4, 9, v12"); c("v_lshl_or_b32 v12, v5, 4, v12")
    c(f"s_lshl_b32 s8, s{S_WAVE}, 11"); c("v_add_u32 v12, s8, v12")
    c(f"s_lshl_b32 s8, s{S_BR}, 17"); c(f"s_lshl_b32 s10, s{S_KVH}, 11"); c("s_or_b32 s8, s8, s10"); c(f"s_lshl_b32 s10, s{S_T}, 7"); c("s_or_b32 s8, s8, s10"); c(f"s_add_u32 s8, s8, {WS_Q}")
    c("v_lshlrev_b32 v13, 14, v7"); c("v_lshl_or_b32 v13, v5, 4, v13"); c("v_add_u32 v13, s8, v13")
    c("v_lshlrev_b32 v14, 4, v0")
    c(["s_waitcnt lgkmcnt(0)", f"s_add_u32 s{S_TAG}, s{S_TAG}, 0x9E3779B1"], need="X0")
    for k in range(1, 4): c(f"s_lshr_b32 s{S_TAG+k}, s{S_TAG}, {8*k}")
    c(f"v_mov_b32 v{V_TAG}, s{S_TAG}")
    for G in range(2):
        for p in range(4):
            for e in range(4):
                sel = S_SELHI if e & 1 else S_SELLO
                c(f"v_perm_b32 v{WQT+16*G+4*e+p}, v{WQD+16*G+2*(2*p+1)+e//2}, v{WQD+16*G+2*(2*p)+e//2}, s{sel}", need=(f"WQ{G}_{2*p+1}",))
        for e in range(4):
            cc = "0" if G == 0 else vr(QD + 4 * e)
            c(f"v_mfma_f32_16x16x32_bf16 {vr(QD+4*e)}, {vr(XD+4*G)}, {vr(WQT+16*G+4*e)}, {cc}", need=(f"X{G}",))
    blk = ["s_mov_b32 exec_lo, 0x00ff00ff", "s_mov_b32 exec_hi, 0xff00ff00"]
    for r in range(4):
        for e in (0, 2):
            blk.append(f"ds_write2_b32 v12, v{QD+4*e+r}, v{QD+4*(e+1)+r} offset0:{32*r+e} offset1:{32*r+e+1}")
    blk += ["s_mov_b64 exec, -1", "s_waitcnt lgkmcnt(0)", "s_barrier"]
    c(blk)
    blk = [f"s_cmp_lg_u32 s{S_WAVE}, 0", "s_cbranch_scc1 L_qpub_done"]
    for p in range(8): blk.append(f"ds_read_b128 {vr(64+4*p)}, v14 offset:{1024*p}")
    blk.append("s_waitcnt lgkmcnt(0)")
    for st in (16, 8, 4):
        for i in range(st): blk.append(f"v_add_f32 v{64+i}, v{64+i}, v{64+st+i}")
    blk += ["v_cvt_pk_bf16_f32 v68, v64, v65", "v_cvt_pk_bf16_f32 v69, v66, v67"]
    blk += ["v_lshlrev_b32 v64, 16, v68", "v_lshlrev_b32 v66, 16, v69"]
    blk += [f"v_perm_b32 v64, v64, v{V_TAG}, s{S_INS}", f"v_perm_b32 v65, v68, v{V_TAG}, s{S_INS+1}", f"v_perm_b32 v66, v66, v{V_TAG}, s{S_INS+2}", f"v_perm_b32 v67, v69, v{V_TAG}, s{S_INS+3}"]
    blk += [f"buffer_store_dwordx4 {vr(64)}, v13, {srd(SRD_WS)}, 0 offen sc1", "s_nop 1", "L_qpub_done:"] + stamp()
    c(blk, mark="qproj_done")
    c(f"s_lshl_b32 s8, s{S_BR}, 5"); c(f"s_or_b32 s8, s8, s{S_HEAD}")
    c("s_lshl_b32 s10, s8, 3"); c(f"s_lshl_b32 s{S_T}, s{S_WAVE}, 1"); c(f"s_or_b32 s10, s10, s{S_T}")
    c("v_lshrrev_b32 v4, 5, v0"); c("v_add_u32 v4, s10, v4")
    c(f"v_lshlrev_b32 v{V_ML}, 6, v4"); c(f"v_add_u32 v{V_ML}, {WS_ML}, v{V_ML}")
    c("v_and_b32 v5, 31, v0"); c(f"v_lshlrev_b32 v{V_O1C}, 11, v4"); c(f"v_lshl_or_b32 v{V_O1C}, v5, 4, v{V_O1C}"); c(f"v_add_u32 v{V_O1C}, {WS_O1}, v{V_O1C}")
    c(f"s_lshl_b32 s10, s{S_HEAD}, 17"); c(f"s_lshl_b32 s{S_T}, s{S_S}, 8"); c(f"s_or_b32 s10, s10, s{S_T}"); c(f"s_lshl_b32 s{S_T}, s{S_WAVE}, 6"); c(f"s_or_b32 s10, s10, s{S_T}")
    c("v_and_b32 v5, 15, v0"); c(f"v_lshlrev_b32 v{V_WO}, 11, v6"); c(f"v_lshl_or_b32 v{V_WO}, v5, 2, v{V_WO}"); c(f"v_add_u32 v{V_WO}, s10, v{V_WO}")
    c("s_lshl_b32 s10, s8, 14"); c(f"s_lshl_b32 s{S_T}, s{S_S}, 12"); c(f"s_or_b32 s10, s10, s{S_T}"); c(f"s_lshl_b32 s{S_T}, s{S_WAVE}, 10"); c(f"s_or_b32 s10, s10, s{S_T}"); c(f"s_add_u32 s10, s10, {WS_P2}")
    c(f"v_lshlrev_b32 v{V_P2S}, 6, v5"); c(f"v_lshl_or_b32 v{V_P2S}, v6, 4, v{V_P2S}"); c(f"v_add_u32 v{V_P2S}, s10, v{V_P2S}")
    c(f"s_lshl_b32 s{S_T}, s{S_HEAD}, 2"); c(f"s_or_b32 s{S_T}, s{S_T}, s{S_S}")
    c(f"s_lshl_b32 s10, s{S_T}, 7"); c(f"s_lshl_b32 s8, s{S_BR}, 19"); c("s_or_b32 s10, s10, s8"); c(f"s_add_u32 s10, s10, {WS_P2}")
    c("v_and_b32 v5, 7, v0"); c(f"v_lshlrev_b32 v{V_P2L}, 14, v7"); c(f"v_lshl_or_b32 v{V_P2L}, v5, 4, v{V_P2L}"); c(f"v_add_u32 v{V_P2L}, s10, v{V_P2L}")
    c(f"s_lshl_b32 s10, s{S_T}, 3"); c(f"s_lshl_b32 s8, s{S_BR}, 10"); c("s_or_b32 s10, s10, s8")
    c("v_and_b32 v5, 1, v0"); c(f"v_lshlrev_b32 v{V_OUT}, 13, v5"); c(f"v_lshl_or_b32 v{V_OUT}, v6, 11, v{V_OUT}"); c("v_and_b32 v5, 6, v0"); c(f"v_or_b32 v{V_OUT}, v{V_OUT}, v5"); c(f"v_add_u32 v{V_OUT}, s10, v{V_OUT}")
    c(["L_chk_q:"] + check_block([QP + 4 * i for i in range(8)], DT, "L_retry_q") + ["L_ok_q:"] + stamp(), need="QP7")
    tail_code += ["L_retry_q:", f"s_cmp_eq_u32 s{S_CNT}, 0", "s_cbranch_scc1 L_ok_q", f"s_sub_u32 s{S_CNT}, s{S_CNT}, 1", "s_sleep 4"] + qpoll_loads() + ["s_waitcnt vmcnt(0)", "s_branch L_chk_q"]
    for i in range(16):
        c(f"v_perm_b32 v{QA+i}, v{QP+2*i+1}, v{QP+2*i}, s{S_SELHI}", mark="q_packed" if i == 15 else None)
    def qk(br, T):
        q = QB if br else QA
        sb = (SB if br else SA) + 8 * T
        nm = f"K{'B' if br else 'A'}{T}_"
        for Tp in range(4):
            for L in range(2):
                i = 2 * Tp + L
                kreg = ar(32 * T + 4 * i) if br else vr(RING + 64 + 32 * T + 4 * i)
                cc = "0" if L == 0 else vr(DT + 4 * Tp)
                c(f"v_mfma_f32_16x16x32_bf16 {vr(DT+4*Tp)}, {kreg}, {vr(q+4*L)}, {cc}", need=nm + str(i), mark=(f"qkA{T}" if (not br and i == 7) else None))
        for Tp in range(4):
            for u in range(2):
                d = DT + 4 * Tp + 2 * u
                c(f"v_add_f32_dpp v{sb+2*Tp+u}, v{d+1}, v{d} row_shl:4 row_mask:0xf bank_mask:0xf bound_ctrl:0")
        mreg = 5 if br else 4
        for i in range(4):
            if T == 0 and i == 0: c(f"v_max_f32 v{mreg}, v{sb}, v{sb+1}")
            else: c(f"v_max3_f32 v{mreg}, v{sb+2*i}, v{sb+2*i+1}, v{mreg}")
    for T in range(8): qk(1, T)
    for T in range(2): qk(0, T)
    c("v_mov_b32 v7, v4"); c("v_mov_b32 v10, v5")
    c("v_permlane16_swap_b32 v7, v4"); c("v_permlane16_swap_b32 v10, v5")
    c("v_max_f32 v4, v4, v7"); c("v_max_f32 v5, v5, v10")
    c("v_mov_b32 v7, v4"); c("v_mov_b32 v10, v5")
    c("v_permlane32_swap_b32 v7, v4"); c("v_permlane32_swap_b32 v10, v5")
    c("v_max_f32 v4, v4, v7"); c("v_max_f32 v5, v5, v10")
    c("v_and_b32 v11, 3, v0"); c("v_lshlrev_b32 v11, 4, v11"); c(f"v_add_u32 v11, {L_M}, v11")
    c(f"s_lshl_b32 s8, s{S_WAVE}, 2"); c("v_add_u32 v7, s8, v11")
    c(["s_mov_b64 exec, 15", "ds_write2_b32 v7, v4, v5 offset0:0 offset1:16", "s_mov_b64 exec, -1", "s_waitcnt lgkmcnt(0)", "s_barrier",
       f"ds_read_b128 {vr(DT)}, v11", f"ds_read_b128 {vr(DT+4)}, v11 offset:64"] + stamp())
    for i in range(4): c(f"v_mov_b32 v{DT+8+i}, 0x3f803f80")
    c("s_waitcnt lgkmcnt(0)")
    for br in range(2):
        d = DT + 4 * br; m = 4 + br
        c(f"v_max3_f32 v{m}, v{d}, v{d+1}, v{d+2}"); c(f"v_max_f32 v{m}, v{m}, v{d+3}"); c(f"v_mul_f32 v{m}, s{S_C}, v{m}")
    for br, nT in ((0, 2), (1, 8)):
        base = SB if br else SA
        for T in range(nT):
            sb = base + 8 * T
            for t in range(8): c(f"v_fma_f32 v{sb+t}, v{sb+t}, s{S_C}, -v{4+br}")
            for t in range(8): c(f"v_exp_f32 v{sb+t}, v{sb+t}")
            for p in range(4): c(f"v_cvt_pk_bf16_f32 v{base+4*T+p}, v{sb+2*p}, v{sb+2*p+1}")
        lreg = LB if br else LA
        for T in range(nT):
            cc = "0" if T == 0 else vr(lreg)
            c(f"v_mfma_f32_16x16x32_bf16 {vr(lreg)}, {vr(DT+8)}, {vr(base+4*T)}, {cc}")
    c("v_and_b32 v10, 3, v0"); c(f"v_mul_u32_u24 v10, {OH}, v10"); c("v_lshl_add_u32 v10, v6, 7, v10"); c(f"s_mul_i32 s8, s{S_WAVE}, {OW}"); c("v_add_u32 v10, s8, v10")
    c(["s_mov_b64 exec, 15", f"ds_write2_b32 v7, v{LA}, v{LB} offset0:32 offset1:48", "s_mov_b64 exec, -1"])
    c(f"s_mul_i32 s8, s{S_WAVE}, {OH}"); c("v_lshl_add_u32 v11, v0, 4, s8")
    c(f"s_lshl_b32 s8, s{S_KVH}, 2"); c(f"s_or_b32 s8, s8, s{S_WAVE}"); c("s_lshl_b32 s8, s8, 3"); c(f"s_or_b32 s8, s8, s{S_B}"); c("s_lshl_b32 s8, s8, 2"); c(f"s_or_b32 s8, s8, s{S_S}")
    c("s_lshl_b32 s8, s8, 9"); c(f"s_add_u32 s8, s8, {WS_O1}"); c("v_lshl_add_u32 v7, v0, 4, s8")
    c([f"s_mov_b32 s{S_MASK}, 0x000f000f", f"s_mov_b32 s{S_MASK+1}, 0x000f000f"] + stamp())
    def pv(n):
        br, T = (0, n) if n < 2 else (1, n - 2)
        vb = RING + 32 * (n % 4)
        P = (SB if br else SA) + 4 * T
        for p in range(4):
            for e in range(8):
                sel = S_SELHI if e & 1 else S_SELLO
                c(f"v_perm_b32 v{VT+4*e+p}, v{vb+4*(2*p+1)+e//2}, v{vb+4*(2*p)+e//2}, s{sel}", need=f"V{n}_{2*p+1}", mark=(f"perm{n}_{p}" if e == 7 else None))
        for e in range(8):
            cc = "0" if T == 0 else vr(OACC + 4 * e)
            c(f"v_mfma_f32_16x16x32_bf16 {vr(OACC+4*e)}, {vr(VT+4*e)}, {vr(P)}, {cc}")
    def combine(br):
        lo = L_OB if br else L_OA
        blk = [f"s_mov_b64 exec, s[{S_MASK}:{S_MASK+1}]"]
        for e in range(8): blk.append(f"ds_write_b128 v10, {vr(OACC+4*e)} offset:{lo+16*e}")
        blk += ["s_mov_b64 exec, 0xffffffff" if False else "s_mov_b32 exec_lo, -1", "s_mov_b32 exec_hi, 0", "s_waitcnt lgkmcnt(0)", "s_barrier"]
        for w in range(4): blk.append(f"ds_read_b128 {vr(VT+4*w)}, v11 offset:{lo+OW*w}")
        blk.append("s_waitcnt lgkmcnt(0)")
        for i in range(4): blk.append(f"v_add_f32 v{VT+i}, v{VT+i}, v{VT+4+i}")
        for i in range(4): blk.append(f"v_add_f32 v{VT+8+i}, v{VT+8+i}, v{VT+12+i}")
        for i in range(4): blk.append(f"v_add_f32 v{VT+i}, v{VT+i}, v{VT+8+i}")
        for i in range(4): blk.append(f"v_perm_b32 v{VT+16+i}, v{VT+i}, v{V_TAG}, s{S_INS+i}")
        so = f"s{S_C80000}" if br else "0"
        blk += [f"buffer_store_dwordx4 {vr(VT+16)}, v7, {srd(SRD_WS)}, {so} offen sc1", "s_mov_b64 exec, -1"]
        return blk
    pv(0); pv(1)
    c(combine(0))
    blk = [f"s_cmp_lg_u32 s{S_WAVE}, 1", "s_cbranch_scc1 L_mlpub_done", "s_mov_b64 exec, 0xff",
           "v_lshlrev_b32 v36, 4, v0", f"ds_read_b128 {vr(40)}, v36 offset:{L_M}", f"ds_read_b128 {vr(44)}, v36 offset:{L_L}",
           f"s_lshl_b32 s8, s{S_KVH}, 11", f"s_lshl_b32 s10, s{S_B}, 6", "s_or_b32 s8, s8, s10", f"s_lshl_b32 s10, s{S_S}, 4", "s_or_b32 s8, s8, s10", f"s_add_u32 s8, s8, {WS_ML}",
           "v_and_b32 v37, 3, v0", "v_lshlrev_b32 v37, 9, v37", "v_lshrrev_b32 v38, 2, v0", "v_lshl_or_b32 v37, v38, 14, v37", "v_add_u32 v37, s8, v37",
           "s_waitcnt lgkmcnt(0)",
           "v_max3_f32 v40, v40, v41, v42", "v_max_f32 v40, v40, v43", f"v_mul_f32 v40, s{S_C}, v40",
           "v_add_f32 v44, v44, v45", "v_add_f32 v46, v46, v47", "v_add_f32 v42, v44, v46",
           "v_lshlrev_b32 v41, 8, v40",
           f"v_perm_b32 v40, v40, v{V_TAG}, s{S_INS}", f"v_perm_b32 v41, v41, v{V_TAG}, s{S_INS+1}", f"v_perm_b32 v42, v42, v{V_TAG}, s{S_INS+2}", f"v_perm_b32 v43, v42, v{V_TAG}, s{S_INS+3}",
           f"buffer_store_dwordx4 {vr(40)}, v37, {srd(SRD_WS)}, 0 offen sc1", "s_mov_b64 exec, -1", "s_nop 1", "L_mlpub_done:"] + stamp()
    c(blk, mark="pubA")
    mlt = mlpoll_at // 8 + 1
    for n in range(2, 10):
        pv(n)
        if n == mlt:
            c(["L_chk_ml:"] + check_block([MLR + 4 * i for i in range(4)], 4, "L_retry_ml") + ["L_ok_ml:"], need="ML3")
            tail_code += ["L_retry_ml:", f"s_cmp_eq_u32 s{S_CNT}, 0", "s_cbranch_scc1 L_ok_ml", f"s_sub_u32 s{S_CNT}, s{S_CNT}, 1", "s_sleep 4"] + ml_loads() + ["s_waitcnt vmcnt(0)", "s_branch L_chk_ml"]
            c("s_mov_b32 s8, 0x07060501")
            for s in range(4): c(f"v_perm_b32 v{MLR+4*s}, v{MLR+4*s}, v{MLR+4*s+1}, s8")
            c(f"v_max3_f32 v4, v{MLR}, v{MLR+4}, v{MLR+8}"); c(f"v_max_f32 v4, v4, v{MLR+12}")
            for s in range(4): c(f"v_sub_f32 v{MLR+4*s}, v{MLR+4*s}, v4")
            for s in range(4): c(f"v_exp_f32 v{MLR+4*s}, v{MLR+4*s}")
            c(f"v_mul_f32 v4, v{MLR}, v{MLR+2}")
            for s in range(1, 4): c(f"v_fmac_f32 v4, v{MLR+4*s}, v{MLR+4*s+2}")
            c("v_rcp_f32 v4, v4")
            for s in range(4): c(f"v_mul_f32 v{MLR+4*s}, v{MLR+4*s}, v4")
            c("v_lshrrev_b32 v4, 5, v0"); c("v_mul_u32_u24 v4, 272, v4"); c("v_and_b32 v5, 31, v0"); c("v_lshl_add_u32 v4, v5, 3, v4")
            c(f"s_mul_i32 s8, s{S_WAVE}, 544"); c(f"s_add_u32 s8, s8, {L_O}"); c("v_add_u32 v4, s8, v4")
            c("v_and_b32 v5, 7, v0"); c("v_mul_u32_u24 v5, 272, v5"); c("v_lshrrev_b32 v6, 4, v0"); c("v_lshl_add_u32 v5, v6, 4, v5")
    c(stamp() + combine(1) + stamp())
    S.run()
    O1R = 64
    WT = 96
    def o1_loads(): return [f"buffer_load_dwordx4 {vr(O1R+4*s)}, v{V_O1C}, {srd(SRD_WS)}, 0 offen offset:{512*s} sc1" for s in range(4)]
    O.extend(o1_loads())
    A("s_waitcnt vmcnt(4)")
    for kc in range(4):
        for p in range(4):
            for e in range(2):
                A(f"v_perm_b32 v{WT+16*e+4*kc+p}, v{WOD+8*kc+2*p+1}, v{WOD+8*kc+2*p}, s{S_SELHI if e else S_SELLO}")
    A(f"s_mov_b32 s{S_MASK}, 0"); A(f"s_mov_b32 s{S_MASK+1}, -1")
    A("L_w_o1:")
    A("s_waitcnt vmcnt(0)")
    O.extend(check_block([O1R + 4 * s for s in range(4)], 80, "L_retry_o1"))
    A("L_ok_o1:")
    tail_code += ["L_retry_o1:", f"s_cmp_eq_u32 s{S_CNT}, 0", "s_cbranch_scc1 L_ok_o1", f"s_sub_u32 s{S_CNT}, s{S_CNT}, 1", "s_sleep 1"] + o1_loads() + ["s_branch L_w_o1"]
    O.extend(stamp())
    for i in range(4): A(f"v_mul_f32 v{80+i}, v{MLR}, v{O1R+i}")
    for s in range(1, 4):
        for i in range(4): A(f"v_fmac_f32 v{80+i}, v{MLR+4*s}, v{O1R+4*s+i}")
    A("v_cvt_pk_bf16_f32 v84, v80, v81"); A("v_cvt_pk_bf16_f32 v85, v82, v83")
    A("ds_write_b64 v4, v[84:85]"); A("s_waitcnt lgkmcnt(0)"); A("s_barrier")
    for kc in range(4): A(f"ds_read_b128 {vr(16+4*kc)}, v5 offset:{L_O+64*kc}")
    A("s_waitcnt lgkmcnt(0)")
    for kc in range(4):
        for e in range(2):
            cc = "0" if kc == 0 else vr(32 + 4 * e)
            A(f"v_mfma_f32_16x16x32_bf16 {vr(32+4*e)}, {vr(16+4*kc)}, {vr(WT+16*e+4*kc)}, {cc}")
    for i in range(4): A(f"v_cndmask_b32 v{40+i}, v{32+i}, v{36+i}, s[{S_MASK}:{S_MASK+1}]")
    for i in range(4): A(f"v_perm_b32 v{40+i}, v{40+i}, v{V_TAG}, s{S_INS+i}")
    A(f"buffer_store_dwordx4 {vr(40)}, v{V_P2S}, {srd(SRD_WS)}, 0 offen sc1")
    O.extend(stamp())
    A(f"s_cmp_lg_u32 s{S_WAVE}, 0"); A("s_cbranch_scc1 L_fin")
    P2R = 64
    def p2_loads(): return [f"buffer_load_dwordx4 {vr(P2R+4*i)}, v{V_P2L}, {srd(SRD_WS)}, {so} offen sc1" for i, so in enumerate(("0", f"s{S_C20000}", f"s{S_C40000}", f"s{S_C60000}"))]
    A("L_p2:")
    O.extend(p2_loads())
    A("s_waitcnt vmcnt(0)")
    O.extend(check_block([P2R + 4 * i for i in range(4)], 80, "L_retry_p2"))
    A("L_ok_p2:")
    tail_code += ["L_retry_p2:", f"s_cmp_eq_u32 s{S_CNT}, 0", "s_cbranch_scc1 L_ok_p2", f"s_sub_u32 s{S_CNT}, s{S_CNT}, 1", "s_sleep 1", "s_branch L_p2"]
    for i in range(4): A(f"v_add_f32 v{P2R+i}, v{P2R+i}, v{P2R+4+i}")
    for i in range(4): A(f"v_add_f32 v{P2R+8+i}, v{P2R+8+i}, v{P2R+12+i}")
    for i in range(4): A(f"v_add_f32 v{P2R+i}, v{P2R+i}, v{P2R+8+i}")
    A(f"v_permlane32_swap_b32 v{P2R}, v{P2R+2}"); A(f"v_permlane32_swap_b32 v{P2R+1}, v{P2R+3}")
    A(f"v_add_f32 v{P2R}, v{P2R}, v{P2R+2}"); A(f"v_add_f32 v{P2R+1}, v{P2R+1}, v{P2R+3}")
    A(f"v_permlane16_swap_b32 v{P2R}, v{P2R+1}")
    A(f"v_add_f32 v{P2R}, v{P2R}, v{P2R+1}")
    A(f"v_add_f32_dpp v{P2R+1}, v{P2R}, v{P2R} row_ror:8 row_mask:0xf bank_mask:0xf")
    A(f"v_cvt_pk_bf16_f32 v{P2R+1}, v{P2R+1}, v{P2R+1}")
    A(f"buffer_store_short v{P2R+1}, v{V_OUT}, {srd(SRD_OUT)}, 0 offen")
    A("s_cmp_lg_u32 s2, 0"); A("s_cbranch_scc1 L_fin")
    A("v_mov_b32 v4, 0"); A("s_mov_b64 exec, 1")
    A(f"buffer_store_dword v{V_TAG}, v4, {srd(SRD_WS)}, 0 offen offset:{WS_E}")
    A("L_fin:")
    if dbg:
        A(f"s_cmp_lg_u32 s2, {dbg[0]}"); A("s_cbranch_scc1 L_end"); A(f"s_cmp_lg_u32 s{S_WAVE}, 0"); A("s_cbranch_scc1 L_end")
        O.extend(stamp())
        A("s_mov_b32 s98, 256"); A("s_mov_b32 s99, 0x20000"); A("s_waitcnt lgkmcnt(0)")
        A("s_mov_b64 exec, 1"); A("v_mov_b32 v4, 0")
        for i in range(nst[0]):
            A(f"s_sub_u32 s8, s{S_STAMP+2*i}, s{S_STAMP}"); A("v_mov_b32 v16, s8")
            A(f"buffer_store_dword v16, v4, s[96:99], 0 offen offset:{4*i}")
        A("s_branch L_end")
    if stamps:
        O.extend(stamp())
        A("s_waitcnt lgkmcnt(0)")
        A("s_lshl_b32 s8, s2, 4"); A(f"s_add_u32 s8, s8, s{S_WAVE}"); A("s_lshl_b32 s8, s8, 7"); A(f"s_add_u32 s8, s8, {64<<20}")
        A("s_mov_b64 exec, 1"); A("v_mov_b32 v4, 0")
        for i in range(nst[0]):
            A(f"v_mov_b32 v16, s{S_STAMP+2*i}"); A(f"v_mov_b32 v17, s{S_STAMP+2*i+1}")
            A(f"buffer_store_dwordx2 v[16:17], v4, {srd(SRD_WS)}, s8 offen offset:{8*i}")
            A("s_nop 1")
    A("L_end:"); A("s_endpgm")
    O.extend(tail_code)
    A("L_code_end:")
    body = finalize(O)
    hdr = HEADER + f"; @launch grid=(256,1,1) block=(256,1,1) lds={LDS_BYTES}\n"
    hdr += '.amdgcn_target "amdgcn-amd-amdhsa--gfx950"\n.text\n' + f".globl {NAME}_kernel\n.p2align 8\n.type {NAME}_kernel,@function\n"
    ftr = f"""
.section .rodata,"a"
.p2align 6
.amdhsa_kernel {NAME}_kernel
  .amdhsa_next_free_vgpr 512
  .amdhsa_next_free_sgpr 102
  .amdhsa_accum_offset 256
  .amdhsa_group_segment_fixed_size 0
  .amdhsa_kernarg_size 104
  .amdhsa_user_sgpr_count 2
  .amdhsa_user_sgpr_kernarg_segment_ptr 1
  .amdhsa_system_sgpr_workgroup_id_x 1
.end_amdhsa_kernel
"""
    return hdr + "\n".join(body) + ftr, nst[0]

if __name__ == "__main__":
    out = sys.argv[1]
    kw = {}
    for a in sys.argv[2:]:
        k, v = a.split("=")
        kw[k] = eval(v)
    txt, n = gen(**kw)
    open(out, "w").write(txt)
    print(out, "stamps:", n, "lines:", txt.count("\n"))
```

```python
import sys, struct
from asmlib import finalize
NAME = "concat_heads__sliding_block_cached__gqa_block_cached__decode"
HEADER = open("cdna_kernels/" + NAME + ".s.ref").read().split("; Override launch geometry")[0]

def f32(x): return struct.unpack("<I", struct.pack("<f", x))[0]

WS_E, WS_ML, WS_O1, WS_Q, WS_P2 = 0, 0x10000, 0x100000, 0x200000, 0x300000
WS_BYTES = 285229056
OH = 560
OW = 4 * OH
QW = 8 * OH
L_QP = 0x0
L_OA, L_OB = 0x0, 4 * OW
L_M, L_Q, L_O = 0x4800, 0x4900, 0x5200
L_W = 0x5B00
LDS_BYTES = 0x5B00 + 0x8000
S_WAVE = 3
SRD_KB, SRD_KA, SRD_VA, SRD_VB, SRD_WQ, SRD_X, SRD_WO, SRD_WS, SRD_OUT = 32, 36, 40, 44, 48, 52, 56, 60, 64
S_BR, S_KVH, S_B, S_S, S_HEAD = 5, 9, 12, 11, 13
S_SOFF = 14
S_T = 15
S_T2 = 4
S_BH = 7
S_SELLO, S_SELHI = 16, 17
S_TAG = 18
S_INS = 22
S_C = 26
S_CNT = 27
S_C4000, S_C8000, S_CC000, S_C80000 = 28, 29, 30, 31
S_XY, S_RED = 6, 94
XOFF = 0x300000
S_MASK = 68
S_PC = 70
S_STAMP = 72
V_K, V_V, V_TAG = 1, 2, 3
QA, QB, DT, SA, SB, OACC, RING, VT = 16, 24, 32, 48, 64, 96, 128, 16
LA, LB = 56, 60
def srd(n): return f"s[{n}:{n+3}]"
def vr(n, k=4): return f"v[{n}:{n+k-1}]"
def ar(n, k=4): return f"a[{n}:{n+k-1}]"

class Sched:
    def __init__(self, out, F, CAP, wstore):
        self.out, self.F, self.CAP, self.wstore = out, F, CAP, wstore
        self.ops = []
        self.landed = 0
        self.seq = {}
        self.marks = set()
        self.comp = []
        self.loads = []
    def c(self, lines, need=(), mark=None, stores=0, bias=0):
        if isinstance(lines, str): lines = [lines]
        if isinstance(need, str): need = (need,)
        self.comp.append((lines, tuple(need), mark, stores, bias))
    def ld(self, text, name=None, pre=(), after=None, F=None, w=1.0):
        self.loads.append((text, name, tuple(pre), after, F, w))
    def wait_landed(self, n):
        if n > self.landed:
            k = len(self.ops) - n
            assert k >= 0
            self.out.append(f"s_waitcnt vmcnt({min(k, 63)})")
            self.landed = max(n, len(self.ops) - min(k, 63))
    def target(self, F, w):
        n = max(self.landed, len(self.ops) - 62)
        if w <= 0: return n
        while sum(self.ops[n:]) + w > F + 1e-9: n += 1
        return n
    def ready(self, item):
        return all(nm in self.seq and self.seq[nm] <= self.landed for nm in item[1])
    def emit_comp(self):
        lines, need, mark, stores, bias = self.comp.pop(0)
        for nm in need:
            assert nm in self.seq, f"compute needs load {nm} not issued yet"
            self.wait_landed(self.seq[nm])
        self.out.extend(lines)
        self.ops += [self.wstore] * stores
        if bias: self.ops[-1] += bias
        if mark: self.marks.add(mark)
        return len(lines)
    def run(self):
        for idx, (text, name, pre, after, F, w) in enumerate(self.loads):
            while after and after not in self.marks:
                self.emit_comp()
            self.out.extend(pre)
            self.wait_landed(self.target(self.F if F is None else F, w))
            self.out.extend(text.split('\n'))
            self.ops.append(w)
            if name: self.seq[name] = len(self.ops)
            n = 0
            while self.comp and n < self.CAP and self.ready(self.comp[0]):
                if idx + 1 < len(self.loads):
                    nx = self.loads[idx + 1]
                    if self.target(self.F if nx[4] is None else nx[4], nx[5]) <= self.landed and (not nx[3] or nx[3] in self.marks):
                        break
                n += self.emit_comp()
        self.loads = []
        while self.comp: self.emit_comp()

def check_ops(regs, tmp):
    o = []; acc = []
    t = tmp
    assert len(regs) % 2 == 0
    for a, b in zip(regs[0::2], regs[1::2]):
        for k in range(4):
            o.append(f"v_bitop3_b32 v{t}, v{a+k}, v{b+k}, s{S_TAG+k} bitop3:0x7e"); acc.append(t); t += 1
            if len(acc) == 3:
                o.append(f"v_or3_b32 v{acc[0]}, v{acc[0]}, v{acc[1]}, v{acc[2]}"); acc = [acc[0]]; t = acc[0] + 1
    if len(acc) == 2: o.append(f"v_or_b32 v{acc[0]}, v{acc[0]}, v{acc[1]}")
    o.append(f"v_and_b32 v{acc[0]}, 0xff, v{acc[0]}")
    o.append(f"v_cmp_ne_u32 vcc, 0, v{acc[0]}")
    return o

def gen(F=5, CAP=24, stamps=False, qpoll_at=62, wq_at=None, Fwo=None, Fend=None, pol="nt", wpol="nt", mlpoll_at=52, dbg=False,
        wstore=-2, wq_every=4, pre_bar=0, depth1=2, depth2=6, sleep1=0, sleep2=0, Fpat=None, Fsched=None, wo_at=40, wo_every=2, touch=True, wo_late=True, fast=True, xpol='nt', red_a=True, warm_at=70, warm_p2='after', ylate=True, inloop=False, dbgstamp=False):
    O = []; A = O.append
    if wq_at is None: wq_at = F
    tail_code = []
    nst = [0]
    def stamp():
        if not (stamps or dbg): return []
        i = nst[0]; nst[0] += 1
        return [f"s_memrealtime s[{S_STAMP+2*i}:{S_STAMP+2*i+1}]"]
    def slow_retry(nm, loads):
        tail_code.extend([f"L_retry_{nm}:", f"s_cmp_eq_u32 s{S_CNT}, 0", f"s_cbranch_scc1 L_ok_{nm}", f"s_sub_u32 s{S_CNT}, s{S_CNT}, 1", "s_sleep 4"]
                         + loads + ["s_waitcnt vmcnt(0)", f"s_branch L_chk_{nm}"])
    A(f"{NAME}_kernel:")
    A("s_cmp_ge_u32 s2, 256"); A("s_cbranch_scc1 L_end")
    A(f"s_load_dwordx2 s[{SRD_KB}:{SRD_KB+1}], s[0:1], 48")
    A(f"s_load_dwordx2 s[{SRD_WS}:{SRD_WS+1}], s[0:1], 96")
    A(f"s_lshr_b32 s{S_BR}, s2, 7"); A(f"s_mul_i32 s6, s{S_BR}, 40")
    A(f"s_load_dwordx2 s[{SRD_X}:{SRD_X+1}], s[0:1], s6")
    A(f"s_load_dwordx2 s[{SRD_WQ}:{SRD_WQ+1}], s[0:1], s6 offset:24")
    A(f"s_load_dwordx2 s[{SRD_WO}:{SRD_WO+1}], s[0:1], s6 offset:32")
    A(f"s_load_dwordx2 s[{SRD_KA}:{SRD_KA+1}], s[0:1], 8")
    A(f"s_load_dwordx2 s[{SRD_VA}:{SRD_VA+1}], s[0:1], 16")
    A(f"s_load_dwordx2 s[{SRD_VB}:{SRD_VB+1}], s[0:1], 56")
    A(f"s_load_dwordx2 s[{SRD_OUT}:{SRD_OUT+1}], s[0:1], 80")
    O.extend(stamp())
    if dbg: A("s_load_dwordx2 s[96:97], s[0:1], 88")
    A("v_lshrrev_b32 v4, 6, v0"); A("v_and_b32 v0, 63, v0"); A(f"v_readfirstlane_b32 s{S_WAVE}, v4")
    A("v_bfe_u32 v5, v0, 1, 1"); A("v_bfe_u32 v6, v0, 2, 2"); A("v_lshlrev_b32 v5, 10, v5"); A("v_lshl_or_b32 v5, v6, 8, v5")
    A("v_lshrrev_b32 v6, 4, v0"); A("v_lshl_or_b32 v5, v6, 5, v5"); A("v_and_b32 v7, 1, v0"); A("v_lshl_or_b32 v5, v7, 4, v5")
    A(f"s_lshr_b32 s{S_B}, s2, 5"); A(f"s_lshl_b32 s8, s{S_B}, 23"); A(f"s_and_b32 s{S_KVH}, s2, 7"); A(f"s_lshl_b32 s10, s{S_KVH}, 20"); A("s_or_b32 s8, s8, s10")
    A(f"s_bfe_u32 s{S_S}, s2, 0x20003"); A(f"s_lshl_b32 s10, s{S_S}, 14"); A("s_or_b32 s8, s8, s10"); A(f"s_lshl_b32 s10, s{S_WAVE}, 12"); A("s_or_b32 s8, s8, s10")
    A(f"s_mov_b32 s{SRD_KB+2}, 0x4000000"); A(f"s_mov_b32 s{SRD_KB+3}, 0x20000")
    A(f"v_add_u32 v{V_K}, s8, v5"); A(f"v_lshl_add_u32 v{V_V}, v0, 4, s8")
    A("s_waitcnt lgkmcnt(0)")

    S = Sched(O, F, CAP, wstore)
    KOFF = [0, 128, 2048, 2176]
    kl = []
    for T in range(8):
        for i in range(8):
            m = 2 * T + i // 4
            pre = [f"s_mov_b32 s{S_SOFF}, {m*65536}"] if (i % 4 == 0 and m) else []
            so = f"s{S_SOFF}" if m else "0"
            kl.append(dict(text=f"buffer_load_dwordx4 {ar(32*T+4*i)}, v{V_K}, {srd(SRD_KB)}, {so} offen offset:{KOFF[i%4]} {pol}", name=f"KB{T}_{i}", pre=pre))
    for T in range(2):
        for i in range(8):
            m = 2 * T + i // 4
            pre = [f"s_mov_b32 s{S_SOFF}, {3072*256 + m*65536}"] if i % 4 == 0 else []
            kl.append(dict(text=f"buffer_load_dwordx4 {vr(RING+64+32*T+4*i)}, v{V_K}, {srd(SRD_KA)}, s{S_SOFF} offen offset:{KOFF[i%4]} {pol}", name=f"KA{T}_{i}", pre=pre, after="setup"))
    WQD, XD, WQT, QD = 128, 48, 64, 96
    V_WQ, V_X = 8, 9
    wql = [dict(text=f"global_load_dword v52, v10, s[{S_PC}:{S_PC+1}]", w=0, after="setup"),
           dict(text=f"buffer_load_dwordx4 {vr(XD)}, v{V_X}, {srd(SRD_X)}, 0 offen", name="X", w=0)]
    if touch:
        wql.append(dict(text=f"buffer_load_dword v53, v{V_V}, {srd(SRD_VB)}, 0 offen {pol}", w=0, pre=["s_mov_b64 exec, 1", f"s_mov_b32 s{S_T2}, {3072*256}"]))
        wql.append(dict(text=f"buffer_load_dword v54, v{V_V}, {srd(SRD_VA)}, s{S_T2} offen {pol}", w=0))
        wql.append(dict(text=f"buffer_load_dword v55, v{V_V}, {srd(SRD_KA)}, s{S_T2} offen {pol}\ns_mov_b64 exec, -1", w=0))
    for t in range(8):
        wql.append(dict(text=f"buffer_load_dwordx4 {vr(WQD+4*t)}, v{V_WQ}, {srd(SRD_WQ)}, s{S_T2} offen {wpol}", name=f"WQ{t}", pre=[f"s_mov_b32 s{S_T2}, {t*8192}"]))
    V_QP = 11
    QP = 128
    qpoll = [f"buffer_load_dwordx4 {vr(QP+4*k)}, v{V_QP}, {srd(SRD_WS)}, 0 offen offset:{512*k} sc1" for k in range(4)]
    qpl = [dict(text=t, name=f"QP{i}", after="qproj_done", w=0) for i, t in enumerate(qpoll)]
    stream = kl[:wq_at]; ki = wq_at
    for d in wql:
        stream.append(d)
        if d.get("w", 1) != 0:
            stream += kl[ki:ki + wq_every]; ki += wq_every
    WOD = RING + 32
    V_WO = 15
    WOL = RING + 96
    wol, wol_late = [], []
    for t in range(8):
        late = wo_late and t >= 4
        dst = WOL + 4 * (t - 4) if late else WOD + 4 * t
        d = dict(text=f"buffer_load_dwordx4 {vr(dst)}, v{V_WO}, {srd(SRD_WO)}, s{S_T2} offen offset:{(t//4)*1024} {wpol}", name=f"WO{t}",
                 pre=[f"s_mov_b32 s{S_T2}, {8*(t%4)*1024}"], after="perm7_3" if late else "wo_addr")
        (wol_late if late else wol).append(d)
    assert ki <= wo_at
    stream += kl[ki:wo_at]; ki = wo_at
    for d in wol:
        stream.append(d); stream += kl[ki:ki + wo_every]; ki += wo_every
    assert ki <= qpoll_at
    stream += kl[ki:qpoll_at] + qpl + kl[qpoll_at:]
    vl = []
    for n in range(10):
        for t in range(8):
            br, T = (0, n) if n < 2 else (1, n - 2)
            m = 2 * T + t // 4
            off = m * 65536 + (3072 * 256 if br == 0 else 0)
            pre = [f"s_mov_b32 s{S_SOFF}, {off}"] if t % 4 == 0 else []
            after = {0: "q_summed", 1: "wo_done", 2: "qkA0", 3: "qkA1"}.get(n, f"perm{n-4}_{t//2}")
            vl.append(dict(text=f"buffer_load_dwordx4 {vr(RING+32*(n%4)+4*t)}, v{V_V}, {srd(SRD_VB if br else SRD_VA)}, s{S_SOFF} offen offset:{(t%4)*1024} {pol}",
                           name=f"V{n}_{t}", pre=pre, after=after))
    if Fend:
        for d in vl[-Fend[0]:]: d["F"] = Fend[1]
    O1R = 64
    P2R = 96 + 160
    MLR = 48
    V_ML, V_O1C, V_P2S, V_P2L, V_OUT = 12, 13, 14, 8, 9
    mlpoll = [f"buffer_load_dwordx4 {vr(MLR+4*s)}, v{V_ML}, {srd(SRD_WS)}, 0 offen offset:{16*s} sc1" for s in range(4)]
    mll = [dict(text=t, name=f"ML{i}", after="pubA", w=0) for i, t in enumerate(mlpoll)]
    if fast: mll.append(dict(text=f"buffer_load_dword a0, v7, {srd(SRD_WS)}, s{S_T2} offen sc1", w=0, pre=[f"s_mov_b32 s{S_T2}, {0x80000 + XOFF}"]))
    o1_loads = [f"buffer_load_dwordx4 {vr(O1R+4*s)}, v{V_O1C}, {srd(SRD_WS)}, s{S_XY} offen offset:{512*s} sc1" for s in range(4)]
    def p2_loads(reg): return [f"buffer_load_dwordx4 {reg(4*i)}, v{V_P2L}, {srd(SRD_WS)}, {so} offen sc1" for i, so in enumerate(("0", f"s{S_C4000}", f"s{S_C8000}", f"s{S_CC000}"))]
    warm = [dict(text="\n".join([f"s_cmp_lg_u32 s{S_BR}, 0", "s_cbranch_scc1 L_nowarm"] + o1_loads + (([f"s_cmp_lg_u32 s{S_RED}, 0", "s_cbranch_scc1 L_nowarm"]
                                 + p2_loads(lambda o: ar(4 + o))) if warm_p2 == 'stream' else []) + ["L_nowarm:", f"buffer_load_ushort a1, v{V_OUT}, {srd(SRD_OUT)}, 0 offen"]), w=-4, after="tail_setup")]
    stream += vl[:mlpoll_at] + mll + vl[mlpoll_at:warm_at] + warm + vl[warm_at:] + wol_late
    if Fpat:
        k = 0
        for d in stream:
            if "F" not in d and d.get("w", 1) == 1:
                d["F"] = Fpat[k % len(Fpat)]; k += 1
    if Fsched:
        k = 0
        for d in stream:
            if d.get("w", 1) == 1:
                for k0, f in Fsched:
                    if k >= k0: d["F"] = f
                k += 1
    for d in stream: S.ld(**d)

    c = S.c
    def prebar():
        if pre_bar: c([], bias=-pre_bar)
    for n, sz in ((SRD_WQ, 0x400000), (SRD_X, 8192), (SRD_KA, 0x4000000), (SRD_VA, 0x4000000), (SRD_VB, 0x4000000), (SRD_WO, 0x400000), (SRD_WS, WS_BYTES), (SRD_OUT, 16384)):
        c(f"s_mov_b32 s{n+2}, {sz}"); c(f"s_mov_b32 s{n+3}, 0x20000")
    c(f"s_load_dword s{S_TAG}, s[{SRD_WS}:{SRD_WS+1}], {WS_E}")
    c(f"s_bfe_u32 s8, s2, 0x20005"); c(f"s_lshl_b32 s{S_HEAD}, s{S_KVH}, 2"); c(f"s_or_b32 s{S_HEAD}, s{S_HEAD}, s8")
    c(f"s_lshl_b32 s8, s{S_S}, 2"); c(f"s_or_b32 s8, s8, s{S_WAVE}")
    c("s_lshl_b32 s10, s8, 18"); c(f"s_lshl_b32 s{S_T}, s{S_HEAD}, 8"); c(f"s_or_b32 s10, s10, s{S_T}")
    c("v_and_b32 v5, 15, v0"); c(f"v_lshlrev_b32 v{V_WQ}, 16, v6"); c(f"v_lshl_or_b32 v{V_WQ}, v5, 4, v{V_WQ}"); c(f"v_add_u32 v{V_WQ}, s10, v{V_WQ}")
    c("s_lshl_b32 s8, s8, 6"); c("v_and_b32 v7, 7, v0")
    c(f"v_lshlrev_b32 v{V_X}, 10, v7"); c(f"v_lshl_or_b32 v{V_X}, v6, 4, v{V_X}"); c(f"v_add_u32 v{V_X}, s8, v{V_X}")
    c([f"s_getpc_b64 s[{S_PC}:{S_PC+1}]", "L_pc:"])
    c("v_lshlrev_b32 v10, 6, v0"); c(f"s_lshl_b32 s8, s{S_WAVE}, 12"); c("v_add_u32 v10, s8, v10")
    c("v_min_u32 v10, L_code_end-L_pc-4, v10", mark="setup")
    c(f"s_mov_b32 s{S_SELLO}, 0x05040100"); c(f"s_mov_b32 s{S_SELHI}, 0x07060302")
    for k in range(4): c(f"s_mov_b32 s{S_INS+k}, {0x07060500 + k:#x}")
    c(f"s_mov_b32 s{S_C}, {f32((128 ** -0.5) * 1.4426950408889634):#x}")
    c(f"s_mov_b32 s{S_CNT}, 0x3ffff")
    c(f"s_mov_b32 s{S_C4000}, 0x4000"); c(f"s_mov_b32 s{S_C8000}, 0x8000"); c(f"s_mov_b32 s{S_CC000}, 0xc000"); c(f"s_mov_b32 s{S_C80000}, 0x80000")
    c(f"s_lshl_b32 s{S_BH}, s{S_BR}, 5"); c(f"s_or_b32 s{S_BH}, s{S_BH}, s{S_HEAD}")
    c("v_lshrrev_b32 v4, 5, v0"); c("v_and_b32 v5, 31, v0"); c("v_lshlrev_b32 v5, 4, v5")
    c(f"v_mul_u32_u24 v12, {OH}, v7"); c("v_lshl_add_u32 v12, v6, 7, v12"); c(f"s_mul_i32 s8, s{S_WAVE}, {QW}"); c("v_add_u32 v12, s8, v12")
    c(f"v_mul_u32_u24 v14, {OH}, v4"); c("v_add_u32 v14, v14, v5"); c(f"s_mul_i32 s8, s{S_WAVE}, {2*OH}"); c("v_add_u32 v14, s8, v14")
    c(f"s_lshl_b32 s8, s{S_BR}, 19"); c(f"s_lshl_b32 s10, s{S_WAVE}, 17"); c("s_or_b32 s8, s8, s10"); c(f"s_lshl_b32 s10, s{S_HEAD}, 11"); c("s_or_b32 s8, s8, s10")
    c(f"s_lshl_b32 s10, s{S_S}, 9"); c("s_or_b32 s8, s8, s10"); c(f"s_add_u32 s8, s8, {WS_Q}")
    c("v_lshl_or_b32 v13, v4, 16, v5"); c("v_add_u32 v13, s8, v13")
    c(f"s_lshl_b32 s8, s{S_B}, 16"); c(f"s_lshl_b32 s10, s{S_KVH}, 13"); c("s_or_b32 s8, s8, s10"); c(f"s_lshl_b32 s10, s{S_WAVE}, 11"); c("s_or_b32 s8, s8, s10"); c(f"s_add_u32 s8, s8, {WS_Q}")
    c(f"v_lshl_or_b32 v{V_QP}, v4, 19, v5"); c(f"v_add_u32 v{V_QP}, s8, v{V_QP}")
    c(f"s_lshl_b32 s10, s{S_HEAD}, 17"); c(f"s_lshl_b32 s{S_T}, s{S_S}, 8"); c(f"s_or_b32 s10, s10, s{S_T}"); c(f"s_lshl_b32 s{S_T}, s{S_WAVE}, 15"); c(f"s_or_b32 s10, s10, s{S_T}")
    c("v_and_b32 v16, 15, v0"); c(f"v_lshlrev_b32 v{V_WO}, 11, v6"); c(f"v_lshl_or_b32 v{V_WO}, v16, 4, v{V_WO}"); c(f"v_add_u32 v{V_WO}, s10, v{V_WO}", mark="wo_addr")
    c(["s_waitcnt lgkmcnt(0)", f"s_add_u32 s{S_TAG}, s{S_TAG}, 0x9E3779B1"], need="X")
    for k in range(1, 4): c(f"s_lshr_b32 s{S_TAG+k}, s{S_TAG}, {8*k}")
    c(f"v_mov_b32 v{V_TAG}, s{S_TAG}")
    def transpose(dst, src, nm, mk=None):
        for p in range(4):
            for e in range(8):
                sel = S_SELHI if e & 1 else S_SELLO
                c(f"v_perm_b32 v{dst+4*e+p}, v{src+4*(2*p+1)+e//2}, v{src+4*(2*p)+e//2}, s{sel}", need=f"{nm}{2*p+1}", mark=(f"{mk}{p}" if (mk and e == 7) else None))
    def sum4_tag(t, o):
        b = []
        for i in range(4): b.append(f"v_add_f32 v{t+i}, v{t+i}, v{t+4+i}")
        for i in range(4): b.append(f"v_add_f32 v{t+8+i}, v{t+8+i}, v{t+12+i}")
        for i in range(4): b.append(f"v_add_f32 v{t+i}, v{t+i}, v{t+8+i}")
        for i in range(4): b.append(f"v_perm_b32 v{o+i}, v{t+i}, v{V_TAG}, s{S_INS+i}")
        return b
    transpose(WQT, WQD, "WQ")
    for e in range(8):
        c(f"v_mfma_f32_16x16x32_bf16 {vr(QD+4*e)}, {vr(WQT+4*e)}, {vr(XD)}, 0")
    prebar()
    blk = ["s_mov_b32 exec_lo, 0x00ff00ff", "s_mov_b32 exec_hi, 0x00ff00ff"]
    for e in range(8): blk.append(f"ds_write_b128 v12, {vr(QD+4*e)} offset:{L_QP+16*e}")
    blk += ["s_mov_b64 exec, -1", "s_waitcnt lgkmcnt(0)", "s_barrier"]
    for w in range(4): blk.append(f"ds_read_b128 {vr(64+4*w)}, v14 offset:{L_QP+QW*w}")
    c(blk)
    c(["s_waitcnt lgkmcnt(0)"] + sum4_tag(64, 80))
    c([f"buffer_store_dwordx4 {vr(80)}, v13, {srd(SRD_WS)}, 0 offen sc1"] + stamp(), mark="qproj_done", stores=1)
    c(f"s_lshl_b32 s10, s{S_BH}, 3"); c(f"s_lshl_b32 s{S_T}, s{S_WAVE}, 1"); c(f"s_or_b32 s10, s10, s{S_T}")
    c("v_add_u32 v7, s10, v4")
    c(f"v_lshlrev_b32 v{V_ML}, 6, v7"); c(f"v_add_u32 v{V_ML}, {WS_ML}, v{V_ML}")
    c(f"v_lshl_or_b32 v{V_O1C}, v7, 11, v5"); c(f"v_add_u32 v{V_O1C}, {WS_O1}, v{V_O1C}")
    c("v_bfe_u32 v7, v0, 3, 2"); c("v_lshlrev_b32 v10, 10, v4"); c("v_lshl_or_b32 v10, v7, 6, v10"); c("v_and_b32 v7, 7, v0"); c("v_lshl_or_b32 v10, v7, 1, v10")
    c(f"s_lshl_b32 s8, s{S_WAVE}, 8"); c("v_add_u32 v10, s8, v10")
    c("v_and_b32 v5, 15, v0")
    c(f"s_lshl_b32 s10, s{S_BH}, 14"); c(f"s_lshl_b32 s{S_T}, s{S_S}, 12"); c(f"s_or_b32 s10, s10, s{S_T}"); c(f"s_lshl_b32 s{S_T}, s{S_WAVE}, 10"); c(f"s_or_b32 s10, s10, s{S_T}"); c(f"s_add_u32 s10, s10, {WS_P2}")
    c(f"v_lshl_add_u32 v{V_P2S}, v0, 4, s10")
    c(f"s_lshl_b32 s{S_T}, s{S_HEAD}, 2"); c(f"s_or_b32 s{S_T}, s{S_T}, s{S_S}")
    c(f"s_and_b32 s{S_RED}, s{S_WAVE}, 1" if red_a else f"s_mov_b32 s{S_RED}, s{S_BR}")
    c(f"s_lshl_b32 s10, s{S_T}, 7"); c(f"s_lshl_b32 s8, s{S_RED}, 19"); c("s_or_b32 s10, s10, s8"); c(f"s_add_u32 s10, s10, {WS_P2}")
    c("v_lshrrev_b32 v5, 3, v0"); c(f"v_lshlrev_b32 v{V_P2L}, 16, v5"); c(f"v_lshl_or_b32 v{V_P2L}, v7, 4, v{V_P2L}"); c(f"v_add_u32 v{V_P2L}, s10, v{V_P2L}")
    c(f"s_lshr_b32 s10, s{S_T}, 5"); c("s_lshl_b32 s10, s10, 8"); c(f"s_and_b32 s8, s{S_T}, 1"); c("s_lshl_b32 s8, s8, 7"); c("s_or_b32 s10, s10, s8")
    c(f"s_bfe_u32 s8, s{S_T}, 0x30002"); c("s_lshl_b32 s8, s8, 1"); c("s_or_b32 s10, s10, s8"); c(f"s_lshl_b32 s8, s{S_RED}, 10"); c("s_or_b32 s10, s10, s8")
    c(f"s_bfe_u32 s8, s{S_T}, 0x10001"); c("s_lshl_b32 s8, s8, 13"); c("s_or_b32 s10, s10, s8")
    c(f"v_lshlrev_b32 v{V_OUT}, 11, v6"); c(f"v_lshl_or_b32 v{V_OUT}, v7, 4, v{V_OUT}"); c(f"v_add_u32 v{V_OUT}, s10, v{V_OUT}")
    c("v_and_b32 v7, 3, v0"); c("v_lshlrev_b32 v7, 8, v7"); c("v_lshl_or_b32 v7, v6, 5, v7"); c("v_bfe_u32 v5, v0, 2, 1"); c("v_lshl_or_b32 v7, v5, 4, v7")
    def wo_half(hf, src, tmp, addr):
        o = []
        for e in range(8):
            for p in range(2):
                o.append(f"v_perm_b32 v{tmp+2*e+p}, v{src+4*(2*p+1)+e//2}, v{src+4*(2*p)+e//2}, s{S_SELHI if e & 1 else S_SELLO}")
            o.append(f"ds_write_b64 v{addr}, {vr(tmp+2*e, 2)} offset:{L_W+16384*hf+512*e}")
        return o
    def wo_read(hf):
        return [f"ds_read_b64 {vr(WT+16*e+4*kc+2*hf, 2)}, v12 offset:{L_W+16384*hf+4096*kc+512*e}" for kc in range(4) for e in range(2)]
    WT = RING + 64
    c(f"s_lshl_b32 s8, s{S_WAVE}, 12"); c("v_lshl_add_u32 v16, v0, 3, s8")
    for hf in range(1 if wo_late else 2):
        for l in wo_half(hf, WOD + 16 * hf, 96 + 16 * hf, 16): c(l, need=f"WO{4*hf+3}")
    c([], mark="wo_done")
    c(["L_chk_q:"] + check_ops([QP + 4 * i for i in range(4)], DT) + ["s_cbranch_vccnz L_retry_q", "L_ok_q:"] + stamp(), need="QP3")
    slow_retry("q", qpoll)
    for i in range(4): c(f"v_add_f32 v{DT+i}, v{QP+i}, v{QP+4+i}")
    for i in range(4): c(f"v_add_f32 v{DT+4+i}, v{QP+8+i}, v{QP+12+i}", mark="q_summed" if i == 3 else None)
    for i in range(4): c(f"v_add_f32 v{DT+i}, v{DT+i}, v{DT+4+i}")
    c(f"v_cvt_pk_bf16_f32 v{DT+4}, v{DT}, v{DT+1}"); c(f"v_cvt_pk_bf16_f32 v{DT+5}, v{DT+2}, v{DT+3}")
    prebar()
    blk = [f"ds_write_b16 v10, v{DT+4} offset:{L_Q}", f"ds_write_b16_d16_hi v10, v{DT+4} offset:{L_Q+16}", f"ds_write_b16 v10, v{DT+5} offset:{L_Q+32}", f"ds_write_b16_d16_hi v10, v{DT+5} offset:{L_Q+48}",
           "s_waitcnt lgkmcnt(0)", "s_barrier"]
    for br in range(2):
        for L in range(2): blk.append(f"ds_read_b128 {vr(QA+8*br+4*L)}, v7 offset:{L_Q+1024*br+128*L}")
    c(blk)
    c("s_waitcnt lgkmcnt(0)")
    def qk(br, T):
        q = QB if br else QA
        sb = (SB if br else SA) + 8 * T
        nm = f"K{'B' if br else 'A'}{T}_"
        for Tp in range(4):
            for L in range(2):
                i = 2 * Tp + L
                kreg = ar(32 * T + 4 * i) if br else vr(RING + 64 + 32 * T + 4 * i)
                cc = "0" if L == 0 else vr(DT + 4 * Tp)
                c(f"v_mfma_f32_16x16x32_bf16 {vr(DT+4*Tp)}, {kreg}, {vr(q+4*L)}, {cc}", need=nm + str(i), mark=(f"qkA{T}" if (not br and i == 7) else None))
        for Tp in range(4):
            for u in range(2):
                d = DT + 4 * Tp + 2 * u
                c(f"v_add_f32_dpp v{sb+2*Tp+u}, v{d+1}, v{d} row_shl:4 row_mask:0xf bank_mask:0xf bound_ctrl:0")
        mreg = 5 if br else 4
        for i in range(4):
            if T == 0 and i == 0: c(f"v_max_f32 v{mreg}, v{sb}, v{sb+1}")
            else: c(f"v_max3_f32 v{mreg}, v{sb+2*i}, v{sb+2*i+1}, v{mreg}")
    for T in range(8): qk(1, T)
    for T in range(2): qk(0, T)
    c("v_mov_b32 v7, v4"); c("v_mov_b32 v10, v5")
    c("v_permlane16_swap_b32 v7, v4"); c("v_permlane16_swap_b32 v10, v5")
    c("v_max_f32 v4, v4, v7"); c("v_max_f32 v5, v5, v10")
    c("v_mov_b32 v7, v4"); c("v_mov_b32 v10, v5")
    c("v_permlane32_swap_b32 v7, v4"); c("v_permlane32_swap_b32 v10, v5")
    c("v_max_f32 v4, v4, v7"); c("v_max_f32 v5, v5, v10")
    c("v_and_b32 v11, 3, v0"); c("v_lshlrev_b32 v11, 4, v11"); c(f"v_add_u32 v11, {L_M}, v11")
    c(f"s_lshl_b32 s8, s{S_WAVE}, 2"); c("v_add_u32 v7, s8, v11")
    prebar()
    c(["s_mov_b64 exec, 15", "ds_write2_b32 v7, v4, v5 offset0:0 offset1:16", "s_mov_b64 exec, -1", "s_waitcnt lgkmcnt(0)", "s_barrier",
       f"ds_read_b128 {vr(DT)}, v11", f"ds_read_b128 {vr(DT+4)}, v11 offset:64"] + stamp())
    for i in range(4): c(f"v_mov_b32 v{DT+8+i}, 0x3f803f80")
    c("s_waitcnt lgkmcnt(0)")
    for br in range(2):
        d = DT + 4 * br; m = 4 + br
        c(f"v_max3_f32 v{m}, v{d}, v{d+1}, v{d+2}"); c(f"v_max_f32 v{m}, v{m}, v{d+3}"); c(f"v_mul_f32 v{m}, s{S_C}, v{m}")
    for br, nT in ((0, 2), (1, 8)):
        base = SB if br else SA
        for T in range(nT):
            sb = base + 8 * T
            for t in range(8): c(f"v_fma_f32 v{sb+t}, v{sb+t}, s{S_C}, -v{4+br}")
            for t in range(8): c(f"v_exp_f32 v{sb+t}, v{sb+t}")
            for p in range(4): c(f"v_cvt_pk_bf16_f32 v{base+4*T+p}, v{sb+2*p}, v{sb+2*p+1}")
        lreg = LB if br else LA
        for T in range(nT):
            cc = "0" if T == 0 else vr(lreg)
            c(f"v_mfma_f32_16x16x32_bf16 {vr(lreg)}, {vr(DT+8)}, {vr(base+4*T)}, {cc}")
    c("v_and_b32 v10, 3, v0"); c(f"v_mul_u32_u24 v10, {OH}, v10"); c("v_lshl_add_u32 v10, v6, 7, v10"); c(f"s_mul_i32 s8, s{S_WAVE}, {OW}"); c("v_add_u32 v10, s8, v10")
    c(f"s_mul_i32 s8, s{S_WAVE}, {OH}"); c("v_lshl_add_u32 v11, v0, 4, s8")
    c(f"s_cmp_eq_u32 s{S_WAVE}, 0");
    S.comp[-1][0].append("s_cselect_b32 s8, 1.0, 0")
    for br in range(2):
        lreg = LB if br else LA
        c(f"v_and_b32 v{lreg}, 0xffffff00, v{4+br}"); c(f"v_sub_f32 v{lreg+1}, v{4+br}, v{lreg}")
        c(f"v_mul_f32 v{lreg}, s8, v{lreg}"); c(f"v_mul_f32 v{lreg+1}, s8, v{lreg+1}")
    c(["s_mov_b64 exec, 15", f"ds_write_b128 v10, {vr(LA)} offset:{L_OA+512}", f"ds_write_b128 v10, {vr(LB)} offset:{L_OA+528}", "s_mov_b64 exec, -1"])
    c(f"s_lshl_b32 s8, s{S_KVH}, 2"); c(f"s_or_b32 s8, s8, s{S_WAVE}"); c("s_lshl_b32 s8, s8, 3"); c(f"s_or_b32 s8, s8, s{S_B}"); c("s_lshl_b32 s8, s8, 2"); c(f"s_or_b32 s8, s8, s{S_S}")
    c("s_lshl_b32 s10, s8, 9"); c(f"s_add_u32 s10, s10, {WS_O1}"); c("v_lshl_add_u32 v7, v0, 4, s10")
    c("s_lshl_b32 s8, s8, 4"); c(f"s_add_u32 s8, s8, {WS_ML}"); c("v_and_b32 v4, 1, v0")
    c(["s_mov_b32 exec_lo, 0", "v_lshl_add_u32 v7, v4, 14, s8", "s_mov_b32 exec_lo, -1"])
    c([f"s_mov_b32 s{S_MASK}, 0x000f000f", f"s_mov_b32 s{S_MASK+1}, 0x000f000f"] + stamp())
    def pv(n):
        br, T = (0, n) if n < 2 else (1, n - 2)
        P = (SB if br else SA) + 4 * T
        transpose(VT, RING + 32 * (n % 4), f"V{n}_", f"perm{n}_")
        for e in range(8):
            cc = "0" if T == 0 else vr(OACC + 4 * e)
            c(f"v_mfma_f32_16x16x32_bf16 {vr(OACC+4*e)}, {vr(VT+4*e)}, {vr(P)}, {cc}")
    def combine(br):
        lo = L_OB if br else L_OA
        blk = [f"s_mov_b64 exec, s[{S_MASK}:{S_MASK+1}]"]
        for e in range(8): blk.append(f"ds_write_b128 v10, {vr(OACC+4*e)} offset:{lo+16*e}")
        blk += ["s_mov_b32 exec_lo, -1", f"s_mov_b32 exec_hi, {0 if br else 3}", "s_waitcnt lgkmcnt(0)", "s_barrier"]
        for w in range(4): blk.append(f"ds_read_b128 {vr(VT+4*w)}, v11 offset:{lo+OW*w}")
        blk.append("s_waitcnt lgkmcnt(0)")
        blk += sum4_tag(VT, VT + 16)
        so = f"s{S_C80000}" if br else "0"
        if br and fast: blk.append(f"buffer_store_dwordx4 {vr(VT+16)}, v7, {srd(SRD_WS)}, s{S_T} offen {xpol}")
        else: blk.append(f"buffer_store_dwordx4 {vr(VT+16)}, v7, {srd(SRD_WS)}, {so} offen sc1")
        blk.append("s_mov_b64 exec, -1")
        return blk
    pv(0); pv(1)
    prebar()
    c(combine(0) + stamp(), stores=1, mark="pubA")
    mlt = mlpoll_at // 8 + 1
    for n in range(2, 10):
        pv(n)
        if n == mlt:
            c(["L_chk_ml:"] + check_ops([MLR + 4 * i for i in range(4)], 4) + ["s_cbranch_vccnz L_retry_ml", "L_ok_ml:"], need="ML3")
            slow_retry("ml", mlpoll)
            for s in range(4):
                c(f"v_and_b32 v{MLR+4*s}, 0xffffff00, v{MLR+4*s}"); c(f"v_and_b32 v{MLR+4*s+1}, 0xffffff00, v{MLR+4*s+1}"); c(f"v_add_f32 v{MLR+4*s}, v{MLR+4*s}, v{MLR+4*s+1}")
            c(f"v_max3_f32 v4, v{MLR}, v{MLR+4}, v{MLR+8}"); c(f"v_max_f32 v4, v4, v{MLR+12}")
            for s in range(4): c(f"v_sub_f32 v{MLR+4*s}, v{MLR+4*s}, v4")
            for s in range(4): c(f"v_exp_f32 v{MLR+4*s}, v{MLR+4*s}")
            c(f"v_mul_f32 v4, v{MLR}, v{MLR+2}")
            for s in range(1, 4): c(f"v_fmac_f32 v4, v{MLR+4*s}, v{MLR+4*s+2}")
            c("v_rcp_f32 v4, v4")
            for s in range(4): c(f"v_mul_f32 v{MLR+4*s}, v{MLR+4*s}, v4")
            c("v_lshrrev_b32 v4, 5, v0"); c("v_mul_u32_u24 v4, 272, v4"); c("v_and_b32 v5, 31, v0"); c("v_lshl_add_u32 v4, v5, 3, v4")
            c(f"s_mul_i32 s8, s{S_WAVE}, 544"); c(f"s_add_u32 s8, s8, {L_O}"); c("v_add_u32 v4, s8, v4")
            c("v_and_b32 v5, 7, v0"); c("v_mul_u32_u24 v5, 272, v5"); c("v_lshrrev_b32 v6, 4, v0"); c("v_lshl_add_u32 v5, v6, 4, v5")
            c(f"s_lshl_b32 s8, s{S_WAVE}, 10"); c("v_lshl_add_u32 v12, v0, 3, s8")
            c(f"s_lshl_b32 s8, s{S_WAVE}, 12"); c("v_lshl_add_u32 v6, v0, 3, s8")
            assert n >= 6
            for hf in range(1 if wo_late else 2):
                for l in wo_read(hf): c(l)
            c(f"s_mul_i32 s{S_XY}, s{S_BR}, {XOFF if fast else 0}")
            if red_a:
                c(f"s_lshr_b32 s{S_RED}, s{S_WAVE}, 1"); c(f"s_or_b32 s{S_RED}, s{S_RED}, s{S_BR}")
            else:
                c(f"s_mov_b32 s{S_RED}, s{S_WAVE}")
            c(f"s_mov_b32 s{S_T}, {0x80000 + XOFF}", mark="tail_setup")
    c(stamp() + combine(1) + stamp(), stores=1, bias=-100)
    S.run()
    wo_younger = len(S.ops) - S.seq['WO7']
    def poll(nm, loads, regs, tmp, depth, entry, extra=(), body=()):
        O.extend(entry)
        A(f"L_retry_{nm}:")
        A("s_mov_b64 exec, vcc"); A(f"s_cmp_eq_u32 s{S_CNT}, 0"); A(f"s_cbranch_scc1 L_ok_{nm}"); A(f"s_sub_u32 s{S_CNT}, s{S_CNT}, 1")
        O.extend(extra)
        A(f"L_poll_{nm}:")
        O.extend(loads)
        A(f"s_waitcnt vmcnt({len(loads)*(depth-1)})")
        A(f"L_chk_{nm}:")
        O.extend(check_ops(regs, tmp))
        if body:
            A("s_mov_b64 exec, -1"); O.extend(body)
        if dbgstamp and nm == "p2": A(f"s_memrealtime s[{S_STAMP+8}:{S_STAMP+9}]")
        A(f"s_cbranch_vccnz L_retry_{nm}")
        A(f"L_ok_{nm}:")
        A("s_mov_b64 exec, -1")
    P2R = 128; R = 144
    p2l = p2_loads(lambda o: vr(P2R + o))
    A(f"s_cmp_eq_u32 s{S_BR}, 0"); A("s_cbranch_scc1 L_arole")
    O.extend(o1_loads)
    if wo_late: A(f"s_waitcnt vmcnt({4 + wo_younger})")
    A("L_roles:")
    tail_code.extend(["L_arole:", f"s_waitcnt vmcnt({wo_younger if wo_late else 1})"]
                     + ([f"s_cmp_lg_u32 s{S_RED}, 0", "s_cbranch_scc1 L_roles"] + p2_loads(lambda o: ar(4 + o)) if warm_p2 == 'after' else []) + ["s_branch L_roles"])
    if wo_late: O.extend(wo_half(1, WOL, WOL + 16, 6))
    ystore = ["s_mov_b32 exec_lo, -1", "s_mov_b32 exec_hi, 0", f"buffer_store_dwordx4 {vr(VT+16)}, v7, {srd(SRD_WS)}, s{S_C80000} offen sc1"]
    A(f"s_mov_b32 s{S_MASK}, 0"); A(f"s_mov_b32 s{S_MASK+1}, -1")
    poll("o1", o1_loads, [O1R + 4 * s for s in range(4)], 80, depth1, ["s_branch L_chk_o1"],
         extra=[f"s_and_b32 s8, s{S_CNT}, 31", "s_cbranch_scc0 L_ypass"] if fast else [])
    if fast: tail_code.extend(["L_ypass:"] + ystore + ["s_mov_b64 exec, vcc"] + [l.replace(f" s{S_XY} ", " 0 ") for l in o1_loads] + ["s_waitcnt vmcnt(0)"]
                              + check_ops([O1R + 4 * s for s in range(4)], 80) + ["s_cbranch_vccz L_ok_o1", "s_mov_b64 exec, vcc"] + o1_loads + ["s_waitcnt vmcnt(0)", "s_branch L_chk_o1"])
    O.extend(stamp())
    for i in range(4): A(f"v_mul_f32 v{80+i}, v{MLR}, v{O1R+i}")
    for s in range(1, 4):
        for i in range(4): A(f"v_fmac_f32 v{80+i}, v{MLR+4*s}, v{O1R+4*s+i}")
    A("v_cvt_pk_bf16_f32 v84, v80, v81"); A("v_cvt_pk_bf16_f32 v85, v82, v83")
    A("ds_write_b64 v4, v[84:85]")
    if fast and not ylate: O.extend(ystore[1:] + ["s_mov_b32 exec_hi, -1"])
    A("s_waitcnt lgkmcnt(0)"); A("s_barrier")
    for kc in range(4):
        A(f"ds_read_b128 {vr(16+4*kc)}, v5 offset:{L_O+64*kc}")
        if wo_late: O.extend(wo_read(1)[2*kc:2*kc+2])
    for kc in range(4):
        A(f"s_waitcnt lgkmcnt({0 if (stamps or dbg) else (3-kc)*(3 if wo_late else 1)})")
        for e in range(2):
            cc = "0" if kc == 0 else vr(88 + 4 * e)
            A(f"v_mfma_f32_16x16x32_bf16 {vr(88+4*e)}, {vr(16+4*kc)}, {vr(WT+16*e+4*kc)}, {cc}")
    for i in range(4): A(f"v_cndmask_b32 v{40+i}, v{88+i}, v{92+i}, s[{S_MASK}:{S_MASK+1}]")
    for i in range(4): A(f"v_perm_b32 v{40+i}, v{40+i}, v{V_TAG}, s{S_INS+i}")
    A(f"buffer_store_dwordx4 {vr(40)}, v{V_P2S}, {srd(SRD_WS)}, 0 offen sc1")
    O.extend(stamp())
    if fast and ylate: O.extend(ystore[1:] + ["s_mov_b32 exec_hi, -1"])
    A(f"s_cmp_lg_u32 s{S_RED}, 0"); A("s_cbranch_scc1 L_fin")
    for i in range(4): A(f"v_not_b32 v{P2R+4*i}, v{V_TAG}")
    red = []
    for i in range(4): red.append(f"v_add_f32 v{R+i}, v{P2R+i}, v{P2R+4+i}")
    for i in range(4): red.append(f"v_add_f32 v{R+4+i}, v{P2R+8+i}, v{P2R+12+i}")
    for i in range(4): red.append(f"v_add_f32 v{R+i}, v{R+i}, v{R+4+i}")
    red += [f"v_permlane32_swap_b32 v{R}, v{R+2}", f"v_permlane32_swap_b32 v{R+1}, v{R+3}", f"v_add_f32 v{R}, v{R}, v{R+2}", f"v_add_f32 v{R+1}, v{R+1}, v{R+3}",
            f"v_permlane16_swap_b32 v{R}, v{R+1}", f"v_add_f32 v{R}, v{R}, v{R+1}", f"v_add_f32_dpp v{R+1}, v{R}, v{R} row_ror:8 row_mask:0xf bank_mask:0xf",
            f"v_cvt_pk_bf16_f32 v{R+1}, v{R+1}, v{R+1}"]
    poll("p2", p2l, [P2R + 4 * i for i in range(4)], 80, depth2, ["s_branch L_poll_p2"], body=red if inloop else ())
    if not inloop: O.extend(red)
    A(f"buffer_store_short v{R+1}, v{V_OUT}, {srd(SRD_OUT)}, 0 offen")
    A(f"s_or_b32 s8, s2, s{S_WAVE}"); A("s_cbranch_scc1 L_fin")
    A("v_mov_b32 v4, 0"); A("s_mov_b64 exec, 1")
    A(f"buffer_store_dword v{V_TAG}, v4, {srd(SRD_WS)}, 0 offen offset:{WS_E}")
    A("L_fin:")
    if dbg:
        A(f"s_cmp_lg_u32 s2, {dbg[0]}"); A("s_cbranch_scc1 L_end"); A(f"s_cmp_lg_u32 s{S_WAVE}, 0"); A("s_cbranch_scc1 L_end")
        O.extend(stamp())
        A("s_mov_b32 s98, 256"); A("s_mov_b32 s99, 0x20000"); A("s_waitcnt lgkmcnt(0)")
        A("s_mov_b64 exec, 1"); A("v_mov_b32 v4, 0")
        for i in range(nst[0]):
            A(f"s_sub_u32 s8, s{S_STAMP+2*i}, s{S_STAMP}"); A("v_mov_b32 v16, s8")
            A(f"buffer_store_dword v16, v4, s[96:99], 0 offen offset:{4*i}")
        A("s_branch L_end")
    if stamps:
        O.extend(stamp())
        A("s_waitcnt lgkmcnt(0)")
        A("s_lshl_b32 s8, s2, 4"); A(f"s_add_u32 s8, s8, s{S_WAVE}"); A("s_lshl_b32 s8, s8, 7"); A(f"s_add_u32 s8, s8, {64<<20}")
        A("s_mov_b64 exec, 1"); A("v_mov_b32 v4, 0")
        for i in range(nst[0]):
            A(f"v_mov_b32 v16, s{S_STAMP+2*i}"); A(f"v_mov_b32 v17, s{S_STAMP+2*i+1}")
            A(f"buffer_store_dwordx2 v[16:17], v4, {srd(SRD_WS)}, s8 offen offset:{8*i}")
            A("s_nop 1")
    A("L_end:"); A("s_endpgm")
    O.extend(tail_code)
    A("L_code_end:")
    body = finalize(O)
    hdr = HEADER + f"; @launch grid=(256,1,1) block=(256,1,1) lds={LDS_BYTES}\n"
    hdr += '.amdgcn_target "amdgcn-amd-amdhsa--gfx950"\n.text\n' + f".globl {NAME}_kernel\n.p2align 8\n.type {NAME}_kernel,@function\n"
    ftr = f"""
.section .rodata,"a"
.p2align 6
.amdhsa_kernel {NAME}_kernel
  .amdhsa_next_free_vgpr 512
  .amdhsa_next_free_sgpr 102
  .amdhsa_accum_offset 256
  .amdhsa_group_segment_fixed_size 0
  .amdhsa_kernarg_size 104
  .amdhsa_user_sgpr_count 2
  .amdhsa_user_sgpr_kernarg_segment_ptr 1
  .amdhsa_system_sgpr_workgroup_id_x 1
.end_amdhsa_kernel
"""
    return hdr + "\n".join(body) + ftr, nst[0]

if __name__ == "__main__":
    out = sys.argv[1]
    kw = {}
    for a in sys.argv[2:]:
        k, v = a.split("=")
        kw[k] = eval(v)
    txt, n = gen(**kw)
    open(out, "w").write(txt)
    print(out, "stamps:", n, "lines:", txt.count("\n"))
```

```python
import sys, struct
from asmlib import finalize
NAME = "concat_heads__sliding_block_cached__gqa_block_cached__decode"
HEADER = open("cdna_kernels/" + NAME + ".s.ref").read().split("; Override launch geometry")[0]

def f32(x): return struct.unpack("<I", struct.pack("<f", x))[0]

WS_E, WS_ML, WS_O1, WS_Q, WS_P2 = 0, 0x10000, 0x100000, 0x200000, 0x300000
WS_BYTES = 285229056
OH = 560
OW = 4 * OH
QW = 8 * OH
L_QP = 0x0
L_OA, L_OB = 0x0, 4 * OW
L_M, L_F, L_Q, L_O = 0x4800, 0x4880, 0x4900, 0x5200
L_W = 0x5B00
LDS_BYTES = 0x5B00 + 0x8000
S_WAVE = 3
SRD_KB, SRD_KA, SRD_VA, SRD_VB, SRD_WQ, SRD_X, SRD_WO, SRD_WS, SRD_OUT = 32, 36, 40, 44, 48, 52, 56, 60, 64
S_BR, S_KVH, S_B, S_S, S_HEAD = 5, 9, 12, 11, 13
S_SOFF = 14
S_T = 15
S_T2 = 4
S_BH = 7
S_SELLO, S_SELHI = 16, 17
S_TAG = 18
S_INS = 22
S_C = 26
S_CNT = 27
S_C4000, S_C8000, S_CC000, S_C80000 = 28, 29, 30, 31
S_XQ, S_RED, S_FOR = 6, 94, 101
WS_QX = 0x400000
S_MASK = 68
S_PC = 70
S_STAMP = 72
V_K, V_V, V_TAG = 1, 2, 3
QA, QB, DT, SA, SB, OACC, RING, VT = 16, 24, 32, 48, 64, 96, 128, 16
LA, LB = 56, 60
def srd(n): return f"s[{n}:{n+3}]"
def vr(n, k=4): return f"v[{n}:{n+k-1}]"
def ar(n, k=4): return f"a[{n}:{n+k-1}]"

class Sched:
    def __init__(self, out, F, CAP, wstore):
        self.out, self.F, self.CAP, self.wstore = out, F, CAP, wstore
        self.ops = []
        self.landed = 0
        self.seq = {}
        self.marks = set()
        self.comp = []
        self.loads = []
    def c(self, lines, need=(), mark=None, stores=0, bias=0):
        if isinstance(lines, str): lines = [lines]
        if isinstance(need, str): need = (need,)
        self.comp.append((lines, tuple(need), mark, stores, bias))
    def ld(self, text, name=None, pre=(), after=None, F=None, w=1.0):
        self.loads.append((text, name, tuple(pre), after, F, w))
    def wait_landed(self, n):
        if n > self.landed:
            k = len(self.ops) - n
            assert k >= 0
            self.out.append(f"s_waitcnt vmcnt({min(k, 63)})")
            self.landed = max(n, len(self.ops) - min(k, 63))
    def target(self, F, w):
        n = max(self.landed, len(self.ops) - 62)
        if w <= 0: return n
        while sum(self.ops[n:]) + w > F + 1e-9: n += 1
        return n
    def ready(self, item):
        return all(nm in self.seq and self.seq[nm] <= self.landed for nm in item[1])
    def emit_comp(self):
        lines, need, mark, stores, bias = self.comp.pop(0)
        for nm in need:
            assert nm in self.seq, f"compute needs load {nm} not issued yet"
            self.wait_landed(self.seq[nm])
        self.out.extend(lines)
        self.ops += [self.wstore] * stores
        if bias: self.ops[-1] += bias
        if mark: self.marks.add(mark)
        return len(lines)
    def run(self):
        for idx, (text, name, pre, after, F, w) in enumerate(self.loads):
            while after and after not in self.marks:
                self.emit_comp()
            self.out.extend(pre)
            self.wait_landed(self.target(self.F if F is None else F, w))
            self.out.extend(text.split('\n'))
            self.ops.append(w)
            if name: self.seq[name] = len(self.ops)
            n = 0
            while self.comp and n < self.CAP and self.ready(self.comp[0]):
                if idx + 1 < len(self.loads):
                    nx = self.loads[idx + 1]
                    if self.target(self.F if nx[4] is None else nx[4], nx[5]) <= self.landed and (not nx[3] or nx[3] in self.marks):
                        break
                n += self.emit_comp()
        self.loads = []
        while self.comp: self.emit_comp()

def check_ops(regs, tmp):
    o = []; acc = []
    t = tmp
    assert len(regs) % 2 == 0
    for a, b in zip(regs[0::2], regs[1::2]):
        for k in range(4):
            o.append(f"v_bitop3_b32 v{t}, v{a+k}, v{b+k}, s{S_TAG+k} bitop3:0x7e"); acc.append(t); t += 1
            if len(acc) == 3:
                o.append(f"v_or3_b32 v{acc[0]}, v{acc[0]}, v{acc[1]}, v{acc[2]}"); acc = [acc[0]]; t = acc[0] + 1
    if len(acc) == 2: o.append(f"v_or_b32 v{acc[0]}, v{acc[0]}, v{acc[1]}")
    o.append(f"v_and_b32 v{acc[0]}, 0xff, v{acc[0]}")
    o.append(f"v_cmp_ne_u32 vcc, 0, v{acc[0]}")
    return o

PATS = {
    0: ([8, 9], [12, 13], [14, 15], [10, 11, 16, 17, 18, 19], [0] * 6),
    81: ([13, 9], [8, 11], [14, 15], [10, 12, 16, 17, 18, 19], [3088, 3600, 1296, 2816, 3088, 0]),
    57: ([13, 14], [16, 11], [15, 9], [12, 8, 10, 17, 18, 19], [1029, 517, 5, 3077, 3077, 1541]),
    12: ([13, 12], [17, 9], [16, 14], [15, 11, 10, 8, 19, 18], [2060, 3072, 1029, 2049, 3073, 3073]),
    78: ([13, 12], [8, 10], [17, 15], [9, 11, 14, 16, 18, 19], [1032, 3336, 72, 2056, 1352, 0]),
    110: ([13, 11], [8, 17], [15, 16], [9, 12, 19, 18, 10, 14], [68, 4, 3140, 1108, 3072, 3136]),
    50: ([13, 10], [8, 11], [14, 15], [9, 12, 16, 17, 18, 19], [2560, 3856, 784, 1536, 2064, 256]),
}
S_RB, S_RA = 95, 100
def gen(F=6, CAP=24, stamps=False, qpoll_at=62, wq_at=None, Fwo=None, Fend=None, pol="nt", wpol="nt", mlpoll_at=52, dbg=False,
        wstore=-2, wq_every=4, pre_bar=0, depth1=2, depth2=3, sleep1=0, sleep2=0, Fpat=None, Fsched=None, wo_at=40, wo_every=2, touch=True, wo_late=True, fast=True, xpol='', red_a=True, warm_at=70, warm_p2='after', ylate=True, inloop=False, dbgstamp=False, pat=110, wgrp=2, scramble=False, prew=False, p2off=None):
    O = []; A = O.append
    global WS_P2
    if p2off is not None: WS_P2 = p2off
    if wq_at is None: wq_at = F
    tail_code = []
    nst = [0]
    def stamp():
        if not (stamps or dbg): return []
        i = nst[0]; nst[0] += 1
        return [f"s_memrealtime s[{S_STAMP+2*i}:{S_STAMP+2*i+1}]"]
    def slow_retry(nm, loads):
        tail_code.extend([f"L_retry_{nm}:", f"s_cmp_eq_u32 s{S_CNT}, 0", f"s_cbranch_scc1 L_ok_{nm}", f"s_sub_u32 s{S_CNT}, s{S_CNT}, 1", "s_sleep 4"]
                         + loads + ["s_waitcnt vmcnt(0)", f"s_branch L_chk_{nm}"])
    A(f"{NAME}_kernel:")
    A("s_cmp_ge_u32 s2, 256"); A("s_cbranch_scc1 L_end")
    if scramble:
        A("s_lshr_b32 s4, s2, 4"); A("s_and_b32 s4, s4, %d" % scramble); A("s_xor_b32 s2, s2, s4")
    A(f"s_load_dwordx2 s[{SRD_KB}:{SRD_KB+1}], s[0:1], 48")
    A(f"s_load_dwordx2 s[{SRD_WS}:{SRD_WS+1}], s[0:1], 96")
    A(f"s_lshr_b32 s{S_BR}, s2, 7"); A(f"s_mul_i32 s6, s{S_BR}, 40")
    A(f"s_load_dwordx2 s[{SRD_X}:{SRD_X+1}], s[0:1], s6")
    A(f"s_load_dwordx2 s[{SRD_WQ}:{SRD_WQ+1}], s[0:1], s6 offset:24")
    A(f"s_load_dwordx2 s[{SRD_WO}:{SRD_WO+1}], s[0:1], s6 offset:32")
    A(f"s_load_dwordx2 s[{SRD_KA}:{SRD_KA+1}], s[0:1], 8")
    A(f"s_load_dwordx2 s[{SRD_VA}:{SRD_VA+1}], s[0:1], 16")
    A(f"s_load_dwordx2 s[{SRD_VB}:{SRD_VB+1}], s[0:1], 56")
    A(f"s_load_dwordx2 s[{SRD_OUT}:{SRD_OUT+1}], s[0:1], 80")
    O.extend(stamp())
    if dbg: A("s_load_dwordx2 s[96:97], s[0:1], 88")
    A("v_lshrrev_b32 v4, 6, v0"); A("v_and_b32 v0, 63, v0"); A(f"v_readfirstlane_b32 s{S_WAVE}, v4")
    PL, PW, PG, PS, PR = PATS[pat]
    PSA = [x for x in PS if x < 18]
    def sc(val, pos): return sum(((val >> i) & 1) << p for i, p in enumerate(pos))
    A("v_lshrrev_b32 v6, 4, v0"); A("v_and_b32 v7, 1, v0"); A("v_lshlrev_b32 v5, 4, v7"); A("v_lshl_or_b32 v5, v6, 5, v5")
    for bit, pos in ((1, PS[0]), (2, PL[0]), (3, PL[1])):
        A(f"v_bfe_u32 v7, v0, {bit}, 1"); A(f"v_lshl_or_b32 v5, v7, {pos}, v5")
    A(f"s_lshr_b32 s{S_B}, s2, 5"); A(f"s_lshl_b32 s8, s{S_B}, 23"); A(f"s_and_b32 s{S_KVH}, s2, 7"); A(f"s_lshl_b32 s10, s{S_KVH}, 20"); A("s_or_b32 s8, s8, s10")
    A(f"s_bfe_u32 s{S_S}, s2, 0x20003")
    for src, pos in ((S_S, PG), (S_WAVE, PW)):
        if pos[1] == pos[0] + 1:
            A(f"s_lshl_b32 s10, s{src}, {pos[0]}"); A("s_or_b32 s8, s8, s10")
        else:
            A(f"s_mul_i32 s10, s{src}, {(1 << pos[0]) | (1 << (pos[1] - 1))}" if abs(pos[0] - pos[1] + 1) > 1 else None)
            assert abs(pos[0] - pos[1] + 1) > 1
            A(f"s_and_b32 s10, s10, {(1 << pos[0]) | (1 << pos[1])}"); A("s_or_b32 s8, s8, s10")
    A(f"s_mov_b32 s{S_RB}, 0")
    for i, r in enumerate(PR):
        if r:
            A(f"s_bitcmp1_b32 s2, {i if i < 3 else i + 2}"); A(f"s_cselect_b32 s10, {r << 8}, 0"); A(f"s_xor_b32 s{S_RB}, s{S_RB}, s10")
    A(f"s_mov_b32 s{SRD_KB+2}, 0x4000000"); A(f"s_mov_b32 s{SRD_KB+3}, 0x20000")
    A(f"v_add_u32 v{V_K}, s8, v5")
    A("v_and_b32 v5, 15, v0"); A(f"v_lshl_add_u32 v{V_V}, v5, 4, s8")
    for bit, pos in ((4, PL[0]), (5, PL[1])):
        A(f"v_bfe_u32 v7, v0, {bit}, 1"); A(f"v_lshl_or_b32 v{V_V}, v7, {pos}, v{V_V}")
    A(f"s_or_b32 s{S_RA}, s{S_RB}, 0xC0000")
    A("s_waitcnt lgkmcnt(0)")

    S = Sched(O, F, CAP, wstore)
    rmask = 0
    for r in PR: rmask |= r << 8
    cur = [None]
    def addr(br, idx, extra):
        off = sc(idx, PS if br else PSA)
        imm = off & 0xfff & ~rmask
        hi = off ^ imm
        base = S_RB if br else S_RA
        if hi == 0: return [], f"s{base}", imm + extra
        pre = [] if cur[0] == (br, hi) else [f"s_xor_b32 s{S_SOFF}, s{base}, {hi}"]
        cur[0] = (br, hi)
        return pre, f"s{S_SOFF}", imm + extra
    kl = []
    for br, nT in ((1, 8), (0, 2)):
        for T in range(nT):
            for i in range(8):
                pre, so, imm = addr(br, 8 * T + (i & ~1), (i & 1) * 128)
                dst = ar(32 * T + 4 * i) if br else vr(RING + 64 + 32 * T + 4 * i)
                kl.append(dict(text=f"buffer_load_dwordx4 {dst}, v{V_K}, {srd(SRD_KB if br else SRD_KA)}, {so} offen offset:{imm} {pol}",
                               name=f"K{'B' if br else 'A'}{T}_{i}", pre=pre, after=None if br else "setup"))
    WQD, XD, WQT, QD = 128, 48, 64, 96
    V_WQ, V_X = 8, 9
    wql = [dict(text=f"global_load_dword v52, v10, s[{S_PC}:{S_PC+1}]", w=0, after="setup"),
           dict(text=f"buffer_load_dwordx4 {vr(XD)}, v{V_X}, {srd(SRD_X)}, 0 offen", name="X", w=0)]
    if touch:
        wql.append(dict(text=f"buffer_load_dword v53, v{V_V}, {srd(SRD_VB)}, 0 offen {pol}", w=0, pre=["s_mov_b64 exec, 1", f"s_mov_b32 s{S_T2}, {3072*256}"]))
        wql.append(dict(text=f"buffer_load_dword v54, v{V_V}, {srd(SRD_VA)}, s{S_T2} offen {pol}", w=0))
        wql.append(dict(text=f"buffer_load_dword v55, v{V_V}, {srd(SRD_KA)}, s{S_T2} offen {pol}\ns_mov_b64 exec, -1", w=0))
    for t in range(8):
        wql.append(dict(text=f"buffer_load_dwordx4 {vr(WQD+4*t)}, v{V_WQ}, {srd(SRD_WQ)}, s{S_T2} offen {wpol}", name=f"WQ{t}", pre=[f"s_mov_b32 s{S_T2}, {t*8192}"]))
    V_QP = 11
    QP = 128
    def qpoll_at_(so): return [f"buffer_load_dwordx4 {vr(QP+4*k)}, v{V_QP}, {srd(SRD_WS)}, {so} offen offset:{512*k} sc1" for k in range(4)]
    qpoll = qpoll_at_(f"s{S_XQ}")
    qpl = [dict(text=t, name=f"QP{i}", after="qproj_done", w=0) for i, t in enumerate(qpoll)]
    stream = kl[:wq_at]; ki = wq_at
    nq = 0
    for d in wql:
        stream.append(d)
        if d.get("w", 1) != 0:
            nq += 1
            if nq % wgrp == 0:
                stream += kl[ki:ki + wq_every * wgrp]; ki += wq_every * wgrp
    WOD = RING + 32
    V_WO = 15
    WOL = RING + 96
    wol, wol_late = [], []
    for t in range(8):
        late = wo_late and t >= 4
        dst = WOL + 4 * (t - 4) if late else WOD + 4 * t
        d = dict(text=f"buffer_load_dwordx4 {vr(dst)}, v{V_WO}, {srd(SRD_WO)}, s{S_T2} offen offset:{(t//4)*1024} {wpol}", name=f"WO{t}",
                 pre=[f"s_mov_b32 s{S_T2}, {8*(t%4)*1024}"], after="perm7_3" if late else "wo_addr")
        (wol_late if late else wol).append(d)
    assert ki <= wo_at
    stream += kl[ki:wo_at]; ki = wo_at
    for nq, d in enumerate(wol):
        stream.append(d)
        if (nq + 1) % wgrp == 0:
            stream += kl[ki:ki + wo_every * wgrp]; ki += wo_every * wgrp
    assert ki <= qpoll_at
    stream += kl[ki:qpoll_at] + qpl + kl[qpoll_at:]
    vl = []
    for n in range(10):
        for t in range(8):
            br, T = (0, n) if n < 2 else (1, n - 2)
            pre, so, imm = addr(br, 8 * T + t, 0)
            after = {0: "q_summed", 1: "wo_done", 2: "qkA0", 3: "qkA1"}.get(n, f"perm{n-4}_{t//2}")
            vl.append(dict(text=f"buffer_load_dwordx4 {vr(RING+32*(n%4)+4*t)}, v{V_V}, {srd(SRD_VB if br else SRD_VA)}, {so} offen offset:{imm} {pol}",
                           name=f"V{n}_{t}", pre=pre, after=after))
    if Fend:
        for d in vl[-Fend[0]:]: d["F"] = Fend[1]
    O1R = 64
    P2R = 96 + 160
    MLR = 48
    V_ML, V_O1C, V_P2S, V_P2L, V_OUT = 12, 13, 14, 8, 9
    mlpoll = [f"buffer_load_dwordx4 {vr(MLR+4*s)}, v{V_ML}, {srd(SRD_WS)}, 0 offen offset:{16*s} sc1" for s in range(4)]
    mll = [dict(text=t, name=f"ML{i}", after="pubA", w=0) for i, t in enumerate(mlpoll)]
    mll.append(dict(text=f"s_mov_b64 exec, 1\nbuffer_load_dword a0, v{V_P2S}, {srd(SRD_WS)}, 0 offen sc1\ns_mov_b64 exec, -1", w=0))
    o1_loads = [f"buffer_load_dwordx4 {vr(O1R+4*s)}, v{V_O1C}, {srd(SRD_WS)}, 0 offen offset:{512*s} sc1" for s in range(4)]
    def p2_loads(reg): return [f"buffer_load_dwordx4 {reg(4*i)}, v{V_P2L}, {srd(SRD_WS)}, {so} offen sc1" for i, so in enumerate(("0", f"s{S_C4000}", f"s{S_C8000}", f"s{S_CC000}"))]
    warm = [dict(text="\n".join([f"s_cmp_lg_u32 s{S_BR}, 0", "s_cbranch_scc1 L_nowarm"] + o1_loads + (([f"s_cmp_lg_u32 s{S_RED}, 0", "s_cbranch_scc1 L_nowarm"]
                                 + p2_loads(lambda o: ar(4 + o))) if warm_p2 == 'stream' else []) + ["L_nowarm:", f"buffer_load_ushort a1, v{V_OUT}, {srd(SRD_OUT)}, 0 offen"]), w=-4, after="tail_setup")]
    stream += vl[:mlpoll_at] + mll + vl[mlpoll_at:warm_at] + warm + vl[warm_at:] + wol_late
    if Fpat:
        k = 0
        for d in stream:
            if "F" not in d and d.get("w", 1) == 1:
                d["F"] = Fpat[k % len(Fpat)]; k += 1
    if Fsched:
        k = 0
        for d in stream:
            if d.get("w", 1) == 1:
                for k0, f in Fsched:
                    if k >= k0: d["F"] = f
                k += 1
    for d in stream: S.ld(**d)

    c = S.c
    def prebar():
        if pre_bar: c([], bias=-pre_bar)
    for n, sz in ((SRD_WQ, 0x400000), (SRD_X, 8192), (SRD_KA, 0x4000000), (SRD_VA, 0x4000000), (SRD_VB, 0x4000000), (SRD_WO, 0x400000), (SRD_WS, WS_BYTES), (SRD_OUT, 16384)):
        c(f"s_mov_b32 s{n+2}, {sz}"); c(f"s_mov_b32 s{n+3}, 0x20000")
    c(f"s_load_dword s{S_TAG}, s[{SRD_WS}:{SRD_WS+1}], {WS_E}")
    c(f"s_bfe_u32 s8, s2, 0x20005"); c(f"s_lshl_b32 s{S_HEAD}, s{S_KVH}, 2"); c(f"s_or_b32 s{S_HEAD}, s{S_HEAD}, s8")
    c(f"s_lshl_b32 s8, s{S_S}, 2"); c(f"s_or_b32 s8, s8, s{S_WAVE}")
    c("s_lshl_b32 s10, s8, 18"); c(f"s_lshl_b32 s{S_T}, s{S_HEAD}, 8"); c(f"s_or_b32 s10, s10, s{S_T}")
    c("v_and_b32 v5, 15, v0"); c(f"v_lshlrev_b32 v{V_WQ}, 16, v6"); c(f"v_lshl_or_b32 v{V_WQ}, v5, 4, v{V_WQ}"); c(f"v_add_u32 v{V_WQ}, s10, v{V_WQ}")
    c("s_lshl_b32 s8, s8, 6"); c("v_and_b32 v7, 7, v0")
    c(f"v_lshlrev_b32 v{V_X}, 10, v7"); c(f"v_lshl_or_b32 v{V_X}, v6, 4, v{V_X}"); c(f"v_add_u32 v{V_X}, s8, v{V_X}")
    c([f"s_getpc_b64 s[{S_PC}:{S_PC+1}]", "L_pc:"])
    c("v_lshlrev_b32 v10, 6, v0"); c(f"s_lshl_b32 s8, s{S_WAVE}, 12"); c("v_add_u32 v10, s8, v10")
    c("v_min_u32 v10, L_code_end-L_pc-4, v10", mark="setup")
    c(f"s_mov_b32 s{S_SELLO}, 0x05040100"); c(f"s_mov_b32 s{S_SELHI}, 0x07060302")
    for k in range(4): c(f"s_mov_b32 s{S_INS+k}, {0x07060500 + k:#x}")
    c(f"s_mov_b32 s{S_C}, {f32((128 ** -0.5) * 1.4426950408889634):#x}")
    c(f"s_mov_b32 s{S_CNT}, 0x3ffff")
    c(f"s_mov_b32 s{S_C4000}, 0x4000"); c(f"s_mov_b32 s{S_C8000}, 0x8000"); c(f"s_mov_b32 s{S_CC000}, 0xc000"); c(f"s_mov_b32 s{S_C80000}, 0x80000")
    c(f"s_lshl_b32 s{S_BH}, s{S_BR}, 5"); c(f"s_or_b32 s{S_BH}, s{S_BH}, s{S_HEAD}")
    c("v_lshrrev_b32 v4, 5, v0"); c("v_and_b32 v5, 31, v0"); c("v_lshlrev_b32 v5, 4, v5")
    c(f"v_mul_u32_u24 v12, {OH}, v7"); c("v_lshl_add_u32 v12, v6, 7, v12"); c(f"s_mul_i32 s8, s{S_WAVE}, {QW}"); c("v_add_u32 v12, s8, v12")
    c(f"v_mul_u32_u24 v14, {OH}, v4"); c("v_add_u32 v14, v14, v5"); c(f"s_mul_i32 s8, s{S_WAVE}, {2*OH}"); c("v_add_u32 v14, s8, v14")
    c(f"s_lshl_b32 s8, s{S_BR}, 19"); c(f"s_lshl_b32 s10, s{S_WAVE}, 17"); c("s_or_b32 s8, s8, s10"); c(f"s_lshl_b32 s10, s{S_HEAD}, 11"); c("s_or_b32 s8, s8, s10")
    c(f"s_lshl_b32 s10, s{S_S}, 9"); c("s_or_b32 s8, s8, s10"); c(f"s_add_u32 s8, s8, {WS_Q}")
    c("v_lshl_or_b32 v13, v4, 16, v5"); c("v_add_u32 v13, s8, v13")
    c(f"s_lshl_b32 s10, s{S_WAVE}, 17"); c("v_subrev_u32 v17, s10, v13")
    c(f"s_getreg_b32 s{S_XQ}, hwreg(HW_REG_XCC_ID, 0, 4)"); c(f"s_lshl_b32 s{S_XQ}, s{S_XQ}, 20"); c(f"s_add_u32 s{S_XQ}, s{S_XQ}, {WS_QX - WS_Q}")
    c(f"s_mov_b32 s{S_FOR}, {0 if fast else 1}")
    c(f"s_lshl_b32 s8, s{S_B}, 16"); c(f"s_lshl_b32 s10, s{S_KVH}, 13"); c("s_or_b32 s8, s8, s10"); c(f"s_lshl_b32 s10, s{S_WAVE}, 11"); c("s_or_b32 s8, s8, s10"); c(f"s_add_u32 s8, s8, {WS_Q}")
    c(f"v_lshl_or_b32 v{V_QP}, v4, 19, v5"); c(f"v_add_u32 v{V_QP}, s8, v{V_QP}")
    c(f"s_lshl_b32 s10, s{S_HEAD}, 17"); c(f"s_lshl_b32 s{S_T}, s{S_S}, 8"); c(f"s_or_b32 s10, s10, s{S_T}"); c(f"s_lshl_b32 s{S_T}, s{S_WAVE}, 15"); c(f"s_or_b32 s10, s10, s{S_T}")
    c("v_and_b32 v16, 15, v0"); c(f"v_lshlrev_b32 v{V_WO}, 11, v6"); c(f"v_lshl_or_b32 v{V_WO}, v16, 4, v{V_WO}"); c(f"v_add_u32 v{V_WO}, s10, v{V_WO}", mark="wo_addr")
    c(["s_waitcnt lgkmcnt(0)", f"s_add_u32 s{S_TAG}, s{S_TAG}, 0x9E3779B1"], need="X")
    for k in range(1, 4): c(f"s_lshr_b32 s{S_TAG+k}, s{S_TAG}, {8*k}")
    c(f"v_mov_b32 v{V_TAG}, s{S_TAG}")
    def transpose(dst, src, nm, mk=None):
        for p in range(4):
            for e in range(8):
                sel = S_SELHI if e & 1 else S_SELLO
                c(f"v_perm_b32 v{dst+4*e+p}, v{src+4*(2*p+1)+e//2}, v{src+4*(2*p)+e//2}, s{sel}", need=f"{nm}{2*p+1}", mark=(f"{mk}{p}" if (mk and e == 7) else None))
    def sum4_tag(t, o):
        b = []
        for i in range(4): b.append(f"v_add_f32 v{t+i}, v{t+i}, v{t+4+i}")
        for i in range(4): b.append(f"v_add_f32 v{t+8+i}, v{t+8+i}, v{t+12+i}")
        for i in range(4): b.append(f"v_add_f32 v{t+i}, v{t+i}, v{t+8+i}")
        for i in range(4): b.append(f"v_perm_b32 v{o+i}, v{t+i}, v{V_TAG}, s{S_INS+i}")
        return b
    transpose(WQT, WQD, "WQ")
    for e in range(8):
        c(f"v_mfma_f32_16x16x32_bf16 {vr(QD+4*e)}, {vr(WQT+4*e)}, {vr(XD)}, 0")
    prebar()
    blk = ["s_mov_b32 exec_lo, 0x00ff00ff", "s_mov_b32 exec_hi, 0x00ff00ff"]
    for e in range(8): blk.append(f"ds_write_b128 v12, {vr(QD+4*e)} offset:{L_QP+16*e}")
    blk += ["s_mov_b64 exec, -1", "s_waitcnt lgkmcnt(0)", "s_barrier"]
    for w in range(4): blk.append(f"ds_read_b128 {vr(64+4*w)}, v14 offset:{L_QP+QW*w}")
    c(blk)
    c(["s_waitcnt lgkmcnt(0)"] + sum4_tag(64, 80))
    c([f"buffer_store_dwordx4 {vr(80)}, v13, {srd(SRD_WS)}, s{S_XQ} offen {xpol}"] + stamp(), mark="qproj_done", stores=1)
    c(f"s_lshl_b32 s10, s{S_BH}, 3"); c(f"s_lshl_b32 s{S_T}, s{S_WAVE}, 1"); c(f"s_or_b32 s10, s10, s{S_T}")
    c("v_add_u32 v7, s10, v4")
    c(f"v_lshlrev_b32 v{V_ML}, 6, v7"); c(f"v_add_u32 v{V_ML}, {WS_ML}, v{V_ML}")
    c(f"v_lshl_or_b32 v{V_O1C}, v7, 11, v5"); c(f"v_add_u32 v{V_O1C}, {WS_O1}, v{V_O1C}")
    c("v_bfe_u32 v7, v0, 3, 2"); c("v_lshlrev_b32 v10, 10, v4"); c("v_lshl_or_b32 v10, v7, 6, v10"); c("v_and_b32 v7, 7, v0"); c("v_lshl_or_b32 v10, v7, 1, v10")
    c(f"s_lshl_b32 s8, s{S_WAVE}, 8"); c("v_add_u32 v10, s8, v10")
    c("v_and_b32 v5, 15, v0")
    c(f"s_lshl_b32 s10, s{S_BH}, 14"); c(f"s_lshl_b32 s{S_T}, s{S_S}, 12"); c(f"s_or_b32 s10, s10, s{S_T}"); c(f"s_lshl_b32 s{S_T}, s{S_WAVE}, 10"); c(f"s_or_b32 s10, s10, s{S_T}"); c(f"s_add_u32 s10, s10, {WS_P2}")
    c(f"v_lshl_add_u32 v{V_P2S}, v0, 4, s10")
    c(f"s_lshl_b32 s{S_T}, s{S_HEAD}, 2"); c(f"s_or_b32 s{S_T}, s{S_T}, s{S_S}")
    c(f"s_and_b32 s{S_RED}, s{S_WAVE}, 1" if red_a else f"s_mov_b32 s{S_RED}, s{S_BR}")
    c(f"s_lshl_b32 s10, s{S_T}, 7"); c(f"s_lshl_b32 s8, s{S_RED}, 19"); c("s_or_b32 s10, s10, s8"); c(f"s_add_u32 s10, s10, {WS_P2}")
    c("v_lshrrev_b32 v5, 3, v0"); c(f"v_lshlrev_b32 v{V_P2L}, 16, v5"); c(f"v_lshl_or_b32 v{V_P2L}, v7, 4, v{V_P2L}"); c(f"v_add_u32 v{V_P2L}, s10, v{V_P2L}")
    c(f"s_lshr_b32 s10, s{S_T}, 5"); c("s_lshl_b32 s10, s10, 8"); c(f"s_and_b32 s8, s{S_T}, 1"); c("s_lshl_b32 s8, s8, 7"); c("s_or_b32 s10, s10, s8")
    c(f"s_bfe_u32 s8, s{S_T}, 0x30002"); c("s_lshl_b32 s8, s8, 1"); c("s_or_b32 s10, s10, s8"); c(f"s_lshl_b32 s8, s{S_RED}, 10"); c("s_or_b32 s10, s10, s8")
    c(f"s_bfe_u32 s8, s{S_T}, 0x10001"); c("s_lshl_b32 s8, s8, 13"); c("s_or_b32 s10, s10, s8")
    c(f"v_lshlrev_b32 v{V_OUT}, 11, v6"); c(f"v_lshl_or_b32 v{V_OUT}, v7, 4, v{V_OUT}"); c(f"v_add_u32 v{V_OUT}, s10, v{V_OUT}")
    c("v_and_b32 v7, 3, v0"); c("v_lshlrev_b32 v7, 8, v7"); c("v_lshl_or_b32 v7, v6, 5, v7"); c("v_bfe_u32 v5, v0, 2, 1"); c("v_lshl_or_b32 v7, v5, 4, v7")
    def wo_half(hf, src, tmp, addr):
        o = []
        for e in range(8):
            for p in range(2):
                o.append(f"v_perm_b32 v{tmp+2*e+p}, v{src+4*(2*p+1)+e//2}, v{src+4*(2*p)+e//2}, s{S_SELHI if e & 1 else S_SELLO}")
            o.append(f"ds_write_b64 v{addr}, {vr(tmp+2*e, 2)} offset:{L_W+16384*hf+512*e}")
        return o
    def wo_read(hf):
        return [f"ds_read_b64 {vr(WT+16*e+4*kc+2*hf, 2)}, v12 offset:{L_W+16384*hf+4096*kc+512*e}" for kc in range(4) for e in range(2)]
    WT = RING + 64
    c(f"s_lshl_b32 s8, s{S_WAVE}, 12"); c("v_lshl_add_u32 v16, v0, 3, s8")
    for hf in range(1 if wo_late else 2):
        for l in wo_half(hf, WOD + 16 * hf, 96 + 16 * hf, 16): c(l, need=f"WO{4*hf+3}")
    c([], mark="wo_done")
    c(["L_chk_q:"] + check_ops([QP + 4 * i for i in range(4)], DT) + ["s_cbranch_vccnz L_retry_q", "L_ok_q:"] + stamp(), need="QP3")
    qchk = check_ops([QP + 4 * i for i in range(4)], DT)
    tail_code.extend(["L_retry_q:", f"s_cmp_eq_u32 s{S_CNT}, 0", "s_cbranch_scc1 L_ok_q", f"s_sub_u32 s{S_CNT}, s{S_CNT}, 1", "s_sleep 4",
                      f"s_and_b32 s8, s{S_CNT}, 3", "s_cbranch_scc0 L_q_far", "L_q_near:"] + qpoll + ["s_waitcnt vmcnt(0)", "s_branch L_chk_q", "L_q_far:"])
    for w in range(4):
        tail_code.extend([f"s_add_u32 s8, s{S_XQ}, {w << 17}", f"buffer_load_dwordx4 {vr(64+4*w)}, v17, {srd(SRD_WS)}, s8 offen sc1"])
    tail_code.extend(["s_waitcnt vmcnt(0)"] + check_ops([64, 68, 72, 76], DT) + ["s_cbranch_vccnz L_q_near"])
    for w in range(4):
        tail_code.extend([f"s_mov_b32 s8, {w << 17}", f"buffer_store_dwordx4 {vr(64+4*w)}, v17, {srd(SRD_WS)}, s8 offen sc1"])
    tail_code.extend(qpoll_at_("0") + ["s_waitcnt vmcnt(0)"] + qchk + ["s_cbranch_vccnz L_q_near"]
                     + qpoll + ["s_waitcnt vmcnt(0)"] + qchk + ["s_cbranch_vccz L_ok_q", f"s_mov_b32 s{S_FOR}, 1"]
                     + qpoll_at_("0") + ["s_waitcnt vmcnt(0)", "s_branch L_ok_q"])
    for i in range(4): c(f"v_add_f32 v{DT+i}, v{QP+i}, v{QP+4+i}")
    for i in range(4): c(f"v_add_f32 v{DT+4+i}, v{QP+8+i}, v{QP+12+i}", mark="q_summed" if i == 3 else None)
    for i in range(4): c(f"v_add_f32 v{DT+i}, v{DT+i}, v{DT+4+i}")
    c(f"v_cvt_pk_bf16_f32 v{DT+4}, v{DT}, v{DT+1}"); c(f"v_cvt_pk_bf16_f32 v{DT+5}, v{DT+2}, v{DT+3}")
    c(f"v_mov_b32 v{DT+6}, s{S_FOR}"); c(f"s_lshl_b32 s8, s{S_WAVE}, 2"); c(f"v_mov_b32 v{DT+7}, s8"); c(f"v_mov_b32 v{DT+12}, 0")
    prebar()
    blk = [f"ds_write_b16 v10, v{DT+4} offset:{L_Q}", f"ds_write_b16_d16_hi v10, v{DT+4} offset:{L_Q+16}", f"ds_write_b16 v10, v{DT+5} offset:{L_Q+32}", f"ds_write_b16_d16_hi v10, v{DT+5} offset:{L_Q+48}",
           f"ds_write_b32 v{DT+7}, v{DT+6} offset:{L_F}", "s_waitcnt lgkmcnt(0)", "s_barrier"]
    for br in range(2):
        for L in range(2): blk.append(f"ds_read_b128 {vr(QA+8*br+4*L)}, v7 offset:{L_Q+1024*br+128*L}")
    blk.append(f"ds_read_b128 {vr(DT+8)}, v{DT+12} offset:{L_F}")
    c(blk)
    c("s_waitcnt lgkmcnt(0)")
    c(f"v_or3_b32 v{DT+8}, v{DT+8}, v{DT+9}, v{DT+10}"); c(f"v_or_b32 v{DT+8}, v{DT+8}, v{DT+11}"); c(f"v_readfirstlane_b32 s{S_FOR}, v{DT+8}")
    def qk(br, T):
        q = QB if br else QA
        sb = (SB if br else SA) + 8 * T
        nm = f"K{'B' if br else 'A'}{T}_"
        for Tp in range(4):
            for L in range(2):
                i = 2 * Tp + L
                kreg = ar(32 * T + 4 * i) if br else vr(RING + 64 + 32 * T + 4 * i)
                cc = "0" if L == 0 else vr(DT + 4 * Tp)
                c(f"v_mfma_f32_16x16x32_bf16 {vr(DT+4*Tp)}, {kreg}, {vr(q+4*L)}, {cc}", need=nm + str(i), mark=(f"qkA{T}" if (not br and i == 7) else None))
        for Tp in range(4):
            for u in range(2):
                d = DT + 4 * Tp + 2 * u
                c(f"v_add_f32_dpp v{sb+2*Tp+u}, v{d+1}, v{d} row_shl:4 row_mask:0xf bank_mask:0xf bound_ctrl:0")
        mreg = 5 if br else 4
        for i in range(4):
            if T == 0 and i == 0: c(f"v_max_f32 v{mreg}, v{sb}, v{sb+1}")
            else: c(f"v_max3_f32 v{mreg}, v{sb+2*i}, v{sb+2*i+1}, v{mreg}")
    for T in range(8): qk(1, T)
    for T in range(2): qk(0, T)
    c("v_mov_b32 v7, v4"); c("v_mov_b32 v10, v5")
    c("v_permlane16_swap_b32 v7, v4"); c("v_permlane16_swap_b32 v10, v5")
    c("v_max_f32 v4, v4, v7"); c("v_max_f32 v5, v5, v10")
    c("v_mov_b32 v7, v4"); c("v_mov_b32 v10, v5")
    c("v_permlane32_swap_b32 v7, v4"); c("v_permlane32_swap_b32 v10, v5")
    c("v_max_f32 v4, v4, v7"); c("v_max_f32 v5, v5, v10")
    c("v_and_b32 v11, 3, v0"); c("v_lshlrev_b32 v11, 4, v11"); c(f"v_add_u32 v11, {L_M}, v11")
    c(f"s_lshl_b32 s8, s{S_WAVE}, 2"); c("v_add_u32 v7, s8, v11")
    prebar()
    c(["s_mov_b64 exec, 15", "ds_write2_b32 v7, v4, v5 offset0:0 offset1:16", "s_mov_b64 exec, -1", "s_waitcnt lgkmcnt(0)", "s_barrier",
       f"ds_read_b128 {vr(DT)}, v11", f"ds_read_b128 {vr(DT+4)}, v11 offset:64"] + stamp())
    for i in range(4): c(f"v_mov_b32 v{DT+8+i}, 0x3f803f80")
    c("s_waitcnt lgkmcnt(0)")
    for br in range(2):
        d = DT + 4 * br; m = 4 + br
        c(f"v_max3_f32 v{m}, v{d}, v{d+1}, v{d+2}"); c(f"v_max_f32 v{m}, v{m}, v{d+3}"); c(f"v_mul_f32 v{m}, s{S_C}, v{m}")
    for br, nT in ((0, 2), (1, 8)):
        base = SB if br else SA
        for T in range(nT):
            sb = base + 8 * T
            for t in range(8): c(f"v_fma_f32 v{sb+t}, v{sb+t}, s{S_C}, -v{4+br}")
            for t in range(8): c(f"v_exp_f32 v{sb+t}, v{sb+t}")
            for p in range(4): c(f"v_cvt_pk_bf16_f32 v{base+4*T+p}, v{sb+2*p}, v{sb+2*p+1}")
        lreg = LB if br else LA
        for T in range(nT):
            cc = "0" if T == 0 else vr(lreg)
            c(f"v_mfma_f32_16x16x32_bf16 {vr(lreg)}, {vr(DT+8)}, {vr(base+4*T)}, {cc}")
    c("v_and_b32 v10, 3, v0"); c(f"v_mul_u32_u24 v10, {OH}, v10"); c("v_lshl_add_u32 v10, v6, 7, v10"); c(f"s_mul_i32 s8, s{S_WAVE}, {OW}"); c("v_add_u32 v10, s8, v10")
    c(f"s_mul_i32 s8, s{S_WAVE}, {OH}"); c("v_lshl_add_u32 v11, v0, 4, s8")
    c(f"s_cmp_eq_u32 s{S_WAVE}, 0");
    S.comp[-1][0].append("s_cselect_b32 s8, 1.0, 0")
    for br in range(2):
        lreg = LB if br else LA
        c(f"v_and_b32 v{lreg}, 0xffffff00, v{4+br}"); c(f"v_sub_f32 v{lreg+1}, v{4+br}, v{lreg}")
        c(f"v_mul_f32 v{lreg}, s8, v{lreg}"); c(f"v_mul_f32 v{lreg+1}, s8, v{lreg+1}")
    c(["s_mov_b64 exec, 15", f"ds_write_b128 v10, {vr(LA)} offset:{L_OA+512}", f"ds_write_b128 v10, {vr(LB)} offset:{L_OA+528}", "s_mov_b64 exec, -1"])
    c(f"s_lshl_b32 s8, s{S_KVH}, 2"); c(f"s_or_b32 s8, s8, s{S_WAVE}"); c("s_lshl_b32 s8, s8, 3"); c(f"s_or_b32 s8, s8, s{S_B}"); c("s_lshl_b32 s8, s8, 2"); c(f"s_or_b32 s8, s8, s{S_S}")
    c("s_lshl_b32 s10, s8, 9"); c(f"s_add_u32 s10, s10, {WS_O1}"); c("v_lshl_add_u32 v7, v0, 4, s10")
    c("s_lshl_b32 s8, s8, 4"); c(f"s_add_u32 s8, s8, {WS_ML}"); c("v_and_b32 v4, 1, v0")
    c(["s_mov_b32 exec_lo, 0", "v_lshl_add_u32 v7, v4, 14, s8", "s_mov_b32 exec_lo, -1"])
    c([f"s_mov_b32 s{S_MASK}, 0x000f000f", f"s_mov_b32 s{S_MASK+1}, 0x000f000f"] + stamp())
    def pv(n):
        br, T = (0, n) if n < 2 else (1, n - 2)
        P = (SB if br else SA) + 4 * T
        transpose(VT, RING + 32 * (n % 4), f"V{n}_", f"perm{n}_")
        for e in range(8):
            cc = "0" if T == 0 else vr(OACC + 4 * e)
            c(f"v_mfma_f32_16x16x32_bf16 {vr(OACC+4*e)}, {vr(VT+4*e)}, {vr(P)}, {cc}")
    def combine(br):
        lo = L_OB if br else L_OA
        blk = [f"s_mov_b64 exec, s[{S_MASK}:{S_MASK+1}]"]
        for e in range(8): blk.append(f"ds_write_b128 v10, {vr(OACC+4*e)} offset:{lo+16*e}")
        blk += ["s_mov_b32 exec_lo, -1", f"s_mov_b32 exec_hi, {0 if br else 3}", "s_waitcnt lgkmcnt(0)", "s_barrier"]
        for w in range(4): blk.append(f"ds_read_b128 {vr(VT+4*w)}, v11 offset:{lo+OW*w}")
        blk.append("s_waitcnt lgkmcnt(0)")
        blk += sum4_tag(VT, VT + 16)
        so = f"s{S_C80000}" if br else "0"
        st = f"buffer_store_dwordx4 {vr(VT+16)}, v7, {srd(SRD_WS)}, {so} offen"
        blk.insert(len(blk) - 4, f"s_cmp_lg_u32 s{S_FOR}, 0")
        blk += [f"s_cbranch_scc1 L_far_st{br}", f"{st} {xpol}"]
        if br == 0 and prew:
            blk += ["s_mov_b32 exec_hi, 0", f"v_not_b32 v{VT}, v{V_TAG}", f"buffer_store_dwordx4 {vr(VT)}, v7, {srd(SRD_WS)}, s{S_C80000} offen {xpol}"]
        blk += [f"L_st_done{br}:", "s_mov_b64 exec, -1"]
        tail_code.extend([f"L_far_st{br}:", f"{st} sc1", f"s_branch L_st_done{br}"])
        return blk
    pv(0); pv(1)
    prebar()
    c(combine(0) + stamp(), stores=1, mark="pubA")
    mlt = mlpoll_at // 8 + 1
    for n in range(2, 10):
        pv(n)
        if n == mlt:
            c(["L_chk_ml:"] + check_ops([MLR + 4 * i for i in range(4)], 4) + ["s_cbranch_vccnz L_retry_ml", "L_ok_ml:"], need="ML3")
            slow_retry("ml", mlpoll)
            for s in range(4):
                c(f"v_and_b32 v{MLR+4*s}, 0xffffff00, v{MLR+4*s}"); c(f"v_and_b32 v{MLR+4*s+1}, 0xffffff00, v{MLR+4*s+1}"); c(f"v_add_f32 v{MLR+4*s}, v{MLR+4*s}, v{MLR+4*s+1}")
            c(f"v_max3_f32 v4, v{MLR}, v{MLR+4}, v{MLR+8}"); c(f"v_max_f32 v4, v4, v{MLR+12}")
            for s in range(4): c(f"v_sub_f32 v{MLR+4*s}, v{MLR+4*s}, v4")
            for s in range(4): c(f"v_exp_f32 v{MLR+4*s}, v{MLR+4*s}")
            c(f"v_mul_f32 v4, v{MLR}, v{MLR+2}")
            for s in range(1, 4): c(f"v_fmac_f32 v4, v{MLR+4*s}, v{MLR+4*s+2}")
            c("v_rcp_f32 v4, v4")
            for s in range(4): c(f"v_mul_f32 v{MLR+4*s}, v{MLR+4*s}, v4")
            c("v_lshrrev_b32 v4, 5, v0"); c("v_mul_u32_u24 v4, 272, v4"); c("v_and_b32 v5, 31, v0"); c("v_lshl_add_u32 v4, v5, 3, v4")
            c(f"s_mul_i32 s8, s{S_WAVE}, 544"); c(f"s_add_u32 s8, s8, {L_O}"); c("v_add_u32 v4, s8, v4")
            c("v_and_b32 v5, 7, v0"); c("v_mul_u32_u24 v5, 272, v5"); c("v_lshrrev_b32 v6, 4, v0"); c("v_lshl_add_u32 v5, v6, 4, v5")
            c(f"s_lshl_b32 s8, s{S_WAVE}, 10"); c("v_lshl_add_u32 v12, v0, 3, s8")
            c(f"s_lshl_b32 s8, s{S_WAVE}, 12"); c("v_lshl_add_u32 v6, v0, 3, s8")
            assert n >= 6
            for hf in range(1 if wo_late else 2):
                for l in wo_read(hf): c(l)
            if red_a:
                c(f"s_lshr_b32 s{S_RED}, s{S_WAVE}, 1"); c(f"s_or_b32 s{S_RED}, s{S_RED}, s{S_BR}")
            else:
                c(f"s_mov_b32 s{S_RED}, s{S_WAVE}")
            c([], mark="tail_setup")
    c(stamp() + combine(1) + stamp(), stores=1, bias=-100)
    S.run()
    wo_younger = len(S.ops) - S.seq['WO7']
    def poll(nm, loads, regs, tmp, depth, entry, extra=(), body=()):
        O.extend(entry)
        A(f"L_retry_{nm}:")
        A("s_mov_b64 exec, vcc"); A(f"s_cmp_eq_u32 s{S_CNT}, 0"); A(f"s_cbranch_scc1 L_ok_{nm}"); A(f"s_sub_u32 s{S_CNT}, s{S_CNT}, 1")
        O.extend(extra)
        A(f"L_poll_{nm}:")
        O.extend(loads)
        A(f"s_waitcnt vmcnt({len(loads)*(depth-1)})")
        A(f"L_chk_{nm}:")
        O.extend(check_ops(regs, tmp))
        if body:
            A("s_mov_b64 exec, -1"); O.extend(body)
        if dbgstamp and nm == "p2": A(f"s_memrealtime s[{S_STAMP+8}:{S_STAMP+9}]")
        A(f"s_cbranch_vccnz L_retry_{nm}")
        A(f"L_ok_{nm}:")
        A("s_mov_b64 exec, -1")
    P2R = 128; R = 144
    p2l = p2_loads(lambda o: vr(P2R + o))
    A(f"s_cmp_eq_u32 s{S_BR}, 0"); A("s_cbranch_scc1 L_arole")
    O.extend(o1_loads)
    if wo_late: A(f"s_waitcnt vmcnt({4 + wo_younger})")
    A("L_roles:")
    tail_code.extend(["L_arole:", f"s_waitcnt vmcnt({wo_younger if wo_late else 1})"]
                     + ([f"s_cmp_lg_u32 s{S_RED}, 0", "s_cbranch_scc1 L_roles"] + p2_loads(lambda o: ar(4 + o)) if warm_p2 == 'after' else []) + ["s_branch L_roles"])
    if wo_late: O.extend(wo_half(1, WOL, WOL + 16, 6))
    A(f"s_mov_b32 s{S_MASK}, 0"); A(f"s_mov_b32 s{S_MASK+1}, -1")
    poll("o1", o1_loads, [O1R + 4 * s for s in range(4)], 80, depth1, ["s_branch L_chk_o1"])
    O.extend(stamp())
    for i in range(4): A(f"v_mul_f32 v{80+i}, v{MLR}, v{O1R+i}")
    for s in range(1, 4):
        for i in range(4): A(f"v_fmac_f32 v{80+i}, v{MLR+4*s}, v{O1R+4*s+i}")
    A("v_cvt_pk_bf16_f32 v84, v80, v81"); A("v_cvt_pk_bf16_f32 v85, v82, v83")
    A("ds_write_b64 v4, v[84:85]")
    A("s_waitcnt lgkmcnt(0)"); A("s_barrier")
    for kc in range(4):
        A(f"ds_read_b128 {vr(16+4*kc)}, v5 offset:{L_O+64*kc}")
        if wo_late: O.extend(wo_read(1)[2*kc:2*kc+2])
    for kc in range(4):
        A(f"s_waitcnt lgkmcnt({0 if (stamps or dbg) else (3-kc)*(3 if wo_late else 1)})")
        for e in range(2):
            cc = "0" if kc == 0 else vr(88 + 4 * e)
            A(f"v_mfma_f32_16x16x32_bf16 {vr(88+4*e)}, {vr(16+4*kc)}, {vr(WT+16*e+4*kc)}, {cc}")
    for i in range(4): A(f"v_cndmask_b32 v{40+i}, v{88+i}, v{92+i}, s[{S_MASK}:{S_MASK+1}]")
    for i in range(4): A(f"v_perm_b32 v{40+i}, v{40+i}, v{V_TAG}, s{S_INS+i}")
    A(f"buffer_store_dwordx4 {vr(40)}, v{V_P2S}, {srd(SRD_WS)}, 0 offen sc1")
    O.extend(stamp())
    A(f"s_cmp_lg_u32 s{S_RED}, 0"); A("s_cbranch_scc1 L_fin")
    for i in range(4): A(f"v_not_b32 v{P2R+4*i}, v{V_TAG}")
    red = []
    for i in range(4): red.append(f"v_add_f32 v{R+i}, v{P2R+i}, v{P2R+4+i}")
    for i in range(4): red.append(f"v_add_f32 v{R+4+i}, v{P2R+8+i}, v{P2R+12+i}")
    for i in range(4): red.append(f"v_add_f32 v{R+i}, v{R+i}, v{R+4+i}")
    red += [f"v_permlane32_swap_b32 v{R}, v{R+2}", f"v_permlane32_swap_b32 v{R+1}, v{R+3}", f"v_add_f32 v{R}, v{R}, v{R+2}", f"v_add_f32 v{R+1}, v{R+1}, v{R+3}",
            f"v_permlane16_swap_b32 v{R}, v{R+1}", f"v_add_f32 v{R}, v{R}, v{R+1}", f"v_add_f32_dpp v{R+1}, v{R}, v{R} row_ror:8 row_mask:0xf bank_mask:0xf",
            f"v_cvt_pk_bf16_f32 v{R+1}, v{R+1}, v{R+1}"]
    poll("p2", p2l, [P2R + 4 * i for i in range(4)], 80, depth2, ["s_branch L_poll_p2"], body=red if inloop else ())
    if not inloop: O.extend(red)
    A(f"buffer_store_short v{R+1}, v{V_OUT}, {srd(SRD_OUT)}, 0 offen")
    A(f"s_or_b32 s8, s2, s{S_WAVE}"); A("s_cbranch_scc1 L_fin")
    A("v_mov_b32 v4, 0"); A("s_mov_b64 exec, 1")
    A(f"buffer_store_dword v{V_TAG}, v4, {srd(SRD_WS)}, 0 offen offset:{WS_E}")
    A("L_fin:")
    if dbg:
        A(f"s_cmp_lg_u32 s2, {dbg[0]}"); A("s_cbranch_scc1 L_end"); A(f"s_cmp_lg_u32 s{S_WAVE}, 0"); A("s_cbranch_scc1 L_end")
        O.extend(stamp())
        A("s_mov_b32 s98, 256"); A("s_mov_b32 s99, 0x20000"); A("s_waitcnt lgkmcnt(0)")
        A("s_mov_b64 exec, 1"); A("v_mov_b32 v4, 0")
        for i in range(nst[0]):
            A(f"s_sub_u32 s8, s{S_STAMP+2*i}, s{S_STAMP}"); A("v_mov_b32 v16, s8")
            A(f"buffer_store_dword v16, v4, s[96:99], 0 offen offset:{4*i}")
        A("s_branch L_end")
    if stamps:
        O.extend(stamp())
        A("s_waitcnt lgkmcnt(0)")
        A("s_lshl_b32 s8, s2, 4"); A(f"s_add_u32 s8, s8, s{S_WAVE}"); A("s_lshl_b32 s8, s8, 7"); A(f"s_add_u32 s8, s8, {64<<20}")
        A("s_mov_b64 exec, 1"); A("v_mov_b32 v4, 0")
        for i in range(nst[0]):
            A(f"v_mov_b32 v16, s{S_STAMP+2*i}"); A(f"v_mov_b32 v17, s{S_STAMP+2*i+1}")
            A(f"buffer_store_dwordx2 v[16:17], v4, {srd(SRD_WS)}, s8 offen offset:{8*i}")
            A("s_nop 1")
    A("L_end:"); A("s_endpgm")
    O.extend(tail_code)
    A("L_code_end:")
    body = finalize(O)
    hdr = HEADER + f"; @launch grid=(256,1,1) block=(256,1,1) lds={LDS_BYTES}\n"
    hdr += '.amdgcn_target "amdgcn-amd-amdhsa--gfx950"\n.text\n' + f".globl {NAME}_kernel\n.p2align 8\n.type {NAME}_kernel,@function\n"
    ftr = f"""
.section .rodata,"a"
.p2align 6
.amdhsa_kernel {NAME}_kernel
  .amdhsa_next_free_vgpr 512
  .amdhsa_next_free_sgpr 102
  .amdhsa_accum_offset 256
  .amdhsa_group_segment_fixed_size 0
  .amdhsa_kernarg_size 104
  .amdhsa_user_sgpr_count 2
  .amdhsa_user_sgpr_kernarg_segment_ptr 1
  .amdhsa_system_sgpr_workgroup_id_x 1
.end_amdhsa_kernel
"""
    return hdr + "\n".join(body) + ftr, nst[0]

if __name__ == "__main__":
    out = sys.argv[1]
    kw = {}
    for a in sys.argv[2:]:
        k, v = a.split("=")
        kw[k] = eval(v)
    txt, n = gen(**kw)
    open(out, "w").write(txt)
    print(out, "stamps:", n, "lines:", txt.count("\n"))
```

```python
import re

def _regs(tok):
    tok = tok.strip()
    tok = tok.lstrip('-')
    if tok.startswith('abs(') or tok.startswith('|'):
        tok = tok.strip('|').replace('abs(', '').rstrip(')')
    m = re.fullmatch(r'([vas])(\d+)', tok)
    if m: return {(m.group(1), int(m.group(2)))}
    m = re.fullmatch(r'([vas])\[(\d+):(\d+)\]', tok)
    if m: return {(m.group(1), i) for i in range(int(m.group(2)), int(m.group(3)) + 1)}
    if tok in ('vcc', 'vcc_lo', 'vcc_hi'): return {('s', 'vcc')}
    if tok == 'exec': return {('s', 'exec')}
    if tok == 'm0': return {('s', 'm0')}
    return set()

TRANS = ('v_exp_f32', 'v_log_f32', 'v_rcp_f32', 'v_rsq_f32', 'v_sqrt_f32')

class Ins:
    def __init__(self, text):
        self.text = text
        t = text.split(';')[0].strip()
        t = re.sub(r'\s+op_sel(_hi)?:\[[^\]]*\]', '', t)
        t = re.sub(r'hwreg\([^)]*\)', 'hwreg', t)
        self.label = t.endswith(':')
        self.directive = t.startswith('.')
        self.empty = not t
        self.op = t.split()[0] if t and not self.label else ''
        rest = t[len(self.op):].strip() if self.op else ''
        ops = [o.strip() for o in rest.split(',')] if rest else []
        self.mods = ''
        if ops:
            parts = ops[-1].split()
            ops[-1] = parts[0]
            self.mods = ' '.join(parts[1:])
        self.ops = ops
        op = self.op
        self.mfma = op.startswith('v_mfma')
        self.valu = op.startswith('v_') and not self.mfma
        self.vmem = op.startswith('buffer_') or op.startswith('global_')
        self.ds = op.startswith('ds_')
        self.salu = op.startswith('s_')
        self.dpp = '_dpp' in op or 'row_' in self.mods or 'quad_perm' in self.mods
        self.permlane = op.startswith('v_permlane')
        self.trans = any(op.startswith(x) for x in TRANS)
        self.readlane = op.startswith('v_readfirstlane') or op.startswith('v_readlane')
        R = [_regs(o) for o in ops]
        w, r = set(), set()
        self.srcC = set(); self.storedata = set()
        if self.mfma:
            w = R[0]; r = R[1] | R[2] | R[3]; self.srcC = R[3]; self.srcAB = R[1] | R[2]
        elif self.permlane:
            w = R[0] | R[1]; r = R[0] | R[1]
        elif self.valu:
            w = R[0]; r = set().union(*R[1:]) if len(R) > 1 else set()
            if op.startswith('v_fmac') or self.dpp: r |= R[0]
            if op.startswith('v_cmpx'): w |= {('s', 'exec')}
            if op.startswith('v_cndmask') and len(ops) == 3: r |= {('s', 'vcc')}
        elif self.vmem:
            if 'store' in op:
                r = set().union(*R)
                d = R[0] if op.startswith('buffer_') else R[1]
                if 'x4' in op or 'x3' in op: self.storedata = d
            elif ' lds' in ' ' + self.mods:
                r = set().union(*R) | {('s', 'm0')}
            elif op in ('buffer_inv', 'buffer_wbl2'):
                pass
            else:
                w = R[0]; r = set().union(*R[1:])
        elif self.ds:
            if 'read' in op or 'bpermute' in op: w = R[0]; r = set().union(*R[1:])
            else: r = set().union(*R)
        elif self.salu:
            if op.startswith('s_cmp') or op.startswith('s_cbranch') or op in ('s_waitcnt', 's_nop', 's_barrier', 's_branch', 's_endpgm', 's_sleep', 's_setprio'):
                r = set().union(*R) if R else set()
            else:
                w = R[0] if R else set(); r = set().union(*R[1:]) if len(R) > 1 else set()
        self.w, self.r = w, r
    def states(self):
        if self.label or self.directive or self.empty or self.text.endswith('; opt'): return 0
        if self.op == 's_nop': return int(self.ops[0], 0) + 1
        return 1

def need(p, c):
    n = 0
    vw = {x for x in p.w if x[0] in 'va'}
    sw = {x for x in p.w if x[0] == 's'}
    if p.valu:
        if c.mfma and vw & c.r: n = max(n, 2)
        if c.valu and c.dpp and vw & c.r: n = max(n, 2)
        if c.permlane and vw & c.r: n = max(n, 2)
        if c.readlane and vw & c.r: n = max(n, 1)
        if p.trans and c.valu and not c.trans and vw & c.r: n = max(n, 1)
        if p.trans and c.mfma and vw & c.r: n = max(n, 2)
        if sw & c.r:
            if c.valu: n = max(n, 2)
            if c.vmem: n = max(n, 5)
            if c.salu: n = max(n, 1)
        if ('s', 'exec') in sw:
            if c.dpp: n = max(n, 5)
            if c.mfma or c.permlane or c.readlane: n = max(n, 4)
        if ('s', 'vcc') in sw and c.op.startswith('s_cbranch_vcc'): n = max(n, 1)
    if p.mfma:
        passes = 4 if '16x16' in p.op else 8
        big = {4: 8, 8: 12}[passes]
        if c.mfma:
            if p.w & c.srcAB: n = max(n, big)
            if p.w & c.srcC and not (c.srcC == p.w and c.op == p.op): n = max(n, passes + 2)
            if p.w & c.w and not (c.srcC == p.w): n = max(n, big)
        elif c.valu or c.vmem or c.ds:
            if p.w & (c.r | c.w): n = max(n, big)
        if c.valu and p.srcC & c.w: n = max(n, passes - 1)
    if p.storedata and p.storedata & c.w: n = max(n, 2)
    if p.salu and ('s', 'm0') in p.w and ('s', 'm0') in c.r: n = max(n, 1)
    return n

def finalize(lines):
    out = []
    for t in lines:
        c = Ins(t)
        if not (c.label or c.directive or c.empty):
            dist = 0; req = 0
            for p in reversed(out[-40:]):
                if dist >= 20: break
                if not (p.label or p.directive or p.empty):
                    req = max(req, need(p, c) - dist)
                dist += p.states()
            while req > 0:
                k = min(req, 16)
                out.append(Ins(f"s_nop {k-1}")); req -= k
        out.append(c)
    return [("" if (i.label or i.directive) else "    ") + i.text for i in out]
```

```python
import sys, struct
from asmlib import finalize
NAME = "concat_heads__sliding_block_cached__gqa_block_cached__decode"
HEADER = open("cdna_kernels/" + NAME + ".s.ref").read().split("; Override launch geometry")[0]
def f32(x): return struct.unpack("<I", struct.pack("<f", x))[0]

WS_P2, WS_PRB, WS_E, WS_DEC, WS_PG, WS_ML, WS_Q, WS_O1, WS_QX = 0, 0x80000, 0x100000, 0x100800, 0x108000, 0x110000, 0x200000, 0x300000, 0x400000
WS_PL = 0x180000
WS_BYTES = 285229056
OH = 560
OW, QW = 4 * OH, 8 * OH
L_QP = 0x0
L_OA, L_OB = 0x0, 4 * OW
L_M, L_F, L_Q, L_O, L_W = 0x4800, 0x4880, 0x4900, 0x5200, 0x5B00
WCS = 80
WK = 64 * WCS
LDS_BYTES = L_W + 8 * WK
S_WAVE, S_T2, S_BR, S_XQ, S_BH, S_KVH, S_S, S_B, S_HEAD, S_SOFF, S_T = 3, 4, 5, 6, 7, 9, 11, 12, 13, 14, 15
S_SELLO, S_SELHI, S_TAG, S_INS, S_C, S_CNT = 16, 17, 18, 22, 26, 27
S_C4000, S_C8000, S_CC000, S_C80000 = 28, 29, 30, 31
SRD_KB, SRD_KA, SRD_VA, SRD_VB, SRD_WQ, SRD_X, SRD_WO, SRD_WS, SRD_OUT = 32, 36, 40, 44, 48, 52, 56, 60, 64
S_MASK, S_PC, S_STAMP, S_E8, S_RB, S_RA, S_FOR = 68, 70, 72, 94, 95, 100, 101
S_P2S = 70
V_K, V_V, V_TAG = 1, 2, 3
QA, QB, DT, SA, SB, OACC, RING, VT = 16, 24, 32, 48, 64, 96, 128, 16
LA, LB = 56, 60
def srd(n): return f"s[{n}:{n+3}]"
def vr(n, k=4): return f"v[{n}:{n+k-1}]"
def ar(n, k=4): return f"a[{n}:{n+k-1}]"
MFMA = "v_mfma_f32_16x16x32_bf16"

class Sched:
    def __init__(self, out, F, CAP, wstore):
        self.out, self.F, self.CAP, self.wstore = out, F, CAP, wstore
        self.ops = []; self.landed = 0; self.seq = {}; self.marks = set(); self.comp = []; self.loads = []
    def c(self, lines, need=(), mark=None, stores=0, bias=0):
        if isinstance(lines, str): lines = [lines]
        if isinstance(need, str): need = (need,)
        self.comp.append((lines, tuple(need), mark, stores, bias))
    def ld(self, text, name=None, pre=(), after=None, F=None, w=1.0, Ft=None, nops=1, need=None):
        self.loads.append((text, name, tuple(pre), after, F, w, Ft, nops, need))
    def wait_landed(self, n):
        if n > self.landed:
            k = len(self.ops) - n
            self.out.append(f"s_waitcnt vmcnt({min(k, 63)})")
            self.landed = max(n, len(self.ops) - min(k, 63))
    def target(self, F, w):
        n = max(self.landed, len(self.ops) - 62)
        if w <= 0: return n
        while sum(self.ops[n:]) + w > F + 1e-9: n += 1
        return n
    def ready(self, item): return all(nm in self.seq and self.seq[nm] <= self.landed for nm in item[1])
    def emit_comp(self):
        lines, need, mark, stores, bias = self.comp.pop(0)
        for nm in need:
            assert nm in self.seq, f"compute needs load {nm} not issued yet"
            self.wait_landed(self.seq[nm])
        self.out.extend(lines)
        self.ops += [self.wstore] * stores
        if bias: self.ops[-1] += bias
        if mark: self.marks.add(mark)
        return len(lines)
    def run(self):
        for idx, (text, name, pre, after, F, w, Ft, nops, need) in enumerate(self.loads):
            while after and after not in self.marks: self.emit_comp()
            self.out.extend(pre)
            self.wait_landed(self.target(self.F if F is None else F, w))
            if Ft is not None:
                nt = self.target(Ft, w)
                if nt > self.landed: self.out.extend([f"s_cbranch_vccnz L_loose{idx}", f"s_waitcnt vmcnt({len(self.ops) - nt}) ; opt", f"L_loose{idx}:"])
            if need: self.wait_landed(self.seq[need])
            self.out.extend(text.split('\n'))
            self.ops += ([w] + [0] * (nops - 1)) if nops else []
            if name: self.seq[name] = len(self.ops)
            n = 0
            while self.comp and n < self.CAP and self.ready(self.comp[0]):
                if idx + 1 < len(self.loads):
                    nx = self.loads[idx + 1]
                    if self.target(nx[6] or (self.F if nx[4] is None else nx[4]), nx[5]) <= self.landed and (not nx[3] or nx[3] in self.marks):
                        break
                n += self.emit_comp()
        self.loads = []
        while self.comp: self.emit_comp()

def check_ops(regs, tmp):
    o = []; acc = []; t = tmp
    assert len(regs) % 2 == 0
    for a, b in zip(regs[0::2], regs[1::2]):
        for k in range(4):
            o.append(f"v_bitop3_b32 v{t}, v{a+k}, v{b+k}, s{S_TAG+k} bitop3:0x7e"); acc.append(t); t += 1
            if len(acc) == 3:
                o.append(f"v_or3_b32 v{acc[0]}, v{acc[0]}, v{acc[1]}, v{acc[2]}"); acc = [acc[0]]; t = acc[0] + 1
    if len(acc) == 2: o.append(f"v_or_b32 v{acc[0]}, v{acc[0]}, v{acc[1]}")
    o.append(f"v_and_b32 v{acc[0]}, 0xff, v{acc[0]}")
    o.append(f"v_cmp_ne_u32 vcc, 0, v{acc[0]}")
    return o
def sum4(dst, src):
    o = []
    for i in (0, 2): o.append(f"v_pk_add_f32 {vr(dst+i,2)}, {vr(src+i,2)}, {vr(src+4+i,2)}")
    for i in (0, 2): o.append(f"v_pk_add_f32 {vr(dst+4+i,2)}, {vr(src+8+i,2)}, {vr(src+12+i,2)}")
    for i in (0, 2): o.append(f"v_pk_add_f32 {vr(dst+i,2)}, {vr(dst+i,2)}, {vr(dst+4+i,2)}")
    return o
def tag4(dst, src): return [f"v_perm_b32 v{dst+i}, v{src+i}, v{V_TAG}, s{S_INS+i}" for i in range(4)]
def flav(loads, f): return [(l[:-4] + " " + f).rstrip() for l in loads]

PATS = {
    81: ([13, 9], [8, 11], [14, 15], [10, 12, 16, 17, 18, 19], [3088, 3600, 1296, 2816, 3088, 0]),
    57: ([13, 14], [16, 11], [15, 9], [12, 8, 10, 17, 18, 19], [1029, 517, 5, 3077, 3077, 1541]),
    110: ([13, 11], [8, 17], [15, 16], [9, 12, 19, 18, 10, 14], [68, 4, 3140, 1108, 3072, 3136]),
}

def gen(F=7, CAP=24, stamps=False, pol="nt", wpol="nt", wstore=0, wq_every=4, wo_at=40, qpoll_at=62, mlpoll_at=34, mlt=3, warm_at=72,
        depth1=2, depth2=3, pat=110, scramble=False, fast=True, probe=True, prb_at=14, prb_n=8, prb_span=7, fb=(0, 6, 8, 26, 9), sb=(4, 6),
        a_bias=0, mlb_at=56, mltb=6, a_store='s8', stage2=False, prb2=3, prb_skip=2, prb_flip=0):
    O = []; A = O.append
    tail_code = []; T = tail_code.extend
    nst = [0]
    def stamp():
        if not stamps: return []
        i = nst[0]; nst[0] += 1
        return [f"s_memrealtime s[{S_STAMP+2*i}:{S_STAMP+2*i+1}]"]
    def giveup(nm): return [f"s_cmp_eq_u32 s{S_CNT}, 0", f"s_cbranch_scc1 L_ok_{nm}", f"s_sub_u32 s{S_CNT}, s{S_CNT}, 1"]
    def slow_retry(nm, loads): T([f"L_retry_{nm}:"] + giveup(nm) + ["s_sleep 4"] + loads + ["s_waitcnt vmcnt(0)", f"s_branch L_chk_{nm}"])
    PL, PW, PG, PS, PR = PATS[pat]
    PSA = [x for x in PS if x < 18]
    def sc(val, pos): return sum(((val >> i) & 1) << p for i, p in enumerate(pos))

    A(f"{NAME}_kernel:")
    A(f"s_load_dwordx2 s[{SRD_KB}:{SRD_KB+1}], s[0:1], 48")
    O.extend(stamp())
    A("s_cmp_ge_u32 s2, 256"); A("s_cbranch_scc1 L_end")
    if scramble: A("s_lshr_b32 s4, s2, 4"); A(f"s_and_b32 s4, s4, {scramble}"); A("s_xor_b32 s2, s2, s4")
    A(f"v_readfirstlane_b32 s{S_WAVE}, v0"); A("v_and_b32 v0, 63, v0")
    A("v_lshrrev_b32 v6, 4, v0"); A("v_and_b32 v7, 1, v0"); A("v_lshlrev_b32 v5, 4, v7"); A("v_lshl_or_b32 v5, v6, 5, v5")
    for bit, pos in ((1, PS[0]), (2, PL[0]), (3, PL[1])):
        A(f"v_bfe_u32 v7, v0, {bit}, 1"); A(f"v_lshl_or_b32 v5, v7, {pos}, v5")
    A(f"s_lshr_b32 s{S_WAVE}, s{S_WAVE}, 6")
    A(f"s_lshr_b32 s{S_B}, s2, 5"); A(f"s_and_b32 s{S_KVH}, s2, 7"); A(f"s_lshl3_add_u32 s8, s{S_B}, s{S_KVH}"); A("s_lshl_b32 s8, s8, 20")
    A(f"s_bfe_u32 s{S_S}, s2, 0x20003")
    for src, pos in ((S_S, PG), (S_WAVE, PW)):
        if pos[1] == pos[0] + 1:
            A(f"s_lshl_b32 s10, s{src}, {pos[0]}")
        else:
            assert abs(pos[0] - pos[1] + 1) > 1
            A(f"s_mul_i32 s10, s{src}, {(1 << pos[0]) | (1 << (pos[1] - 1))}"); A(f"s_and_b32 s10, s10, {(1 << pos[0]) | (1 << pos[1])}")
        A("s_or_b32 s8, s8, s10")
    first = True
    for i, r in enumerate(PR):
        if r:
            A(f"s_bitcmp1_b32 s2, {i if i < 3 else i + 2}")
            if first: A(f"s_cselect_b32 s{S_RB}, {r << 8}, 0"); first = False
            else: A(f"s_cselect_b32 s10, {r << 8}, 0"); A(f"s_xor_b32 s{S_RB}, s{S_RB}, s10")
    A(f"s_mov_b32 s{SRD_KB+2}, 0x4000000"); A(f"s_mov_b32 s{SRD_KB+3}, 0x20000")
    A(f"v_add_u32 v{V_K}, s8, v5")
    A("s_waitcnt lgkmcnt(0)")

    S = Sched(O, F, CAP, wstore); c = S.c
    rmask = 0
    for r in PR: rmask |= r << 8
    cur = [None]
    def addr(br, idx, extra):
        off = sc(idx, PS if br else PSA)
        imm = off & 0xfff & ~rmask
        hi = off ^ imm
        base = S_RB if br else S_RA
        if hi == 0: return [], f"s{base}", imm + extra
        pre = [] if cur[0] == (br, hi) else [f"s_xor_b32 s{S_SOFF}, s{base}, {hi}"]
        cur[0] = (br, hi)
        return pre, f"s{S_SOFF}", imm + extra
    kl = []
    for br, nT in ((1, 8), (0, 2)):
        for Tn in range(nT):
            for i in range(8):
                pre, so, imm = addr(br, 8 * Tn + (i & ~1), (i & 1) * 128)
                dst = ar(32 * Tn + 4 * i) if br else vr(RING + 64 + 32 * Tn + 4 * i)
                kl.append(dict(text=f"buffer_load_dwordx4 {dst}, v{V_K}, {srd(SRD_KB if br else SRD_KA)}, {so} offen offset:{imm} {pol}",
                               name=f"K{'B' if br else 'A'}{Tn}_{i}", pre=pre))
    WQD, XD, WQT, QD = 128, 48, 64, 96
    V_WQ, V_X, V_QP, V_WO = 8, 9, 11, 15
    QP = 128
    side0 = dict(text="\n".join([f"global_load_dword v52, v10, s[{S_PC}:{S_PC+1}]", f"buffer_load_dwordx4 {vr(XD)}, v{V_X}, {srd(SRD_X)}, 0 offen",
                                 f"s_cmp_lg_u32 s{S_WAVE}, 3", "s_cbranch_scc1 L_notouch", "s_mov_b64 exec, 1",
                                 f"buffer_load_dword v53, v{V_V}, {srd(SRD_VB)}, 0 offen {pol}", f"buffer_load_dword v54, v{V_V}, {srd(SRD_VA)}, s{S_RA} offen {pol}",
                                 f"buffer_load_dword v55, v{V_V}, {srd(SRD_KA)}, s{S_RA} offen {pol}", "s_mov_b64 exec, -1", "L_notouch:"]), w=0, nops=2, name="X", after="setup")
    wql = [dict(text=f"buffer_load_dwordx4 {vr(WQD+4*t)}, v{V_WQ}, {srd(SRD_WQ)}, s{S_T2} offen {wpol}", name=f"WQ{t}", pre=[f"s_mov_b32 s{S_T2}, {t*8192}"]) for t in range(8)]
    WOD, WOL = RING + 32, RING + 96
    def wo_ld(i, dst, sr, nm, after):
        return dict(text=f"buffer_load_dwordx4 {vr(dst+4*i)}, v{V_WO}, {srd(sr)}, s{S_T2} offen {wpol}", name=nm, pre=[f"s_mov_b32 s{S_T2}, {8*i*1024}"], after=after)
    wol = [wo_ld(i, WOD, SRD_WO, f"WO{i}", "wo_addr") for i in range(4)]
    wol_late = [wo_ld(i, WOL, SRD_WQ, f"WL{i}", "perm7_3") for i in range(4)]
    def qpoll_(so): return [f"buffer_load_dwordx4 {vr(QP+4*k)}, v{V_QP}, {srd(SRD_WS)}, {so} offen offset:{512*k} sc1" for k in range(4)]
    qpoll = qpoll_(f"s{S_XQ}")
    stream = kl[:F] + [side0]; ki = F
    for i in range(0, 8, 2):
        stream += wql[i:i+2] + kl[ki:ki + 2 * wq_every]; ki += 2 * wq_every
    assert ki <= wo_at
    stream += kl[ki:wo_at]; ki = wo_at
    for i in range(0, 4, 2):
        stream += wol[i:i+2] + kl[ki:ki + 4]; ki += 4
    assert ki <= qpoll_at
    stream += kl[ki:qpoll_at] + [dict(text=t, name=f"QP{i}", after="qproj_done", w=0) for i, t in enumerate(flav(qpoll, ""))] + kl[qpoll_at:]
    if probe:
        k = 0
        for d in stream:
            if d.get("w", 1) != 1: continue
            t, ph = divmod(k - prb_at, prb_span); k += 1
            if t < 0 or t > prb_n or (t == prb_n and ph): continue
            post = []
            if t == prb_n:
                post = ["s_cmp_eq_u32 s99, 0", "s_cbranch_scc1 L_decide", "L_decided:"]
                T(["L_decide:", "s_cmp_gt_i32 s98, 0", "s_cselect_b32 vcc_lo, 0x100, 0" if prb_flip else "s_cselect_b32 vcc_lo, 0, 0x100", "s_getreg_b32 vcc_hi, hwreg(HW_REG_XCC_ID, 0, 3)", "s_lshl_b32 vcc_hi, vcc_hi, 12",
                   "s_or_b32 vcc_lo, vcc_lo, vcc_hi", "v_mov_b32 v56, vcc_lo"] + [f"v_perm_b32 v{56+i}, v56, v{V_TAG}, s{S_INS+i}" for i in (3, 2, 1, 0)]
                  + [f"v_mov_b32 v60, {WS_DEC}", "s_mov_b64 exec, 1", f"buffer_store_dwordx4 {vr(56)}, v60, {srd(SRD_WS)}, 0 offen sc1", "s_mov_b64 exec, -1", "s_branch L_decided"])
            elif ph == 0:
                if t == 0: d["after"] = "tag"
                post = ["s_waitcnt lgkmcnt(0)", f"s_mov_b32 s96, s{S_TAG}", f"s_mov_b32 s97, s{S_TAG}", "s_cmp_lg_u32 s99, 0", f"s_cbranch_scc1 L_np{t}"]
                for g, x in [(0, 0)] + [(1, x) for x in range(prb2 - 1, -1, -1)]:
                    post.append(f"s_load_dword s{S_BH if x else 96+g}, s[{SRD_WS}:{SRD_WS+1}], {WS_PRB + (t % 10) * 0xc300 + (t // 10) * 0x80 + x * 0x4400 + (((t & 1) ^ g ^ prb_flip) << 13)}")
                post.append(f"L_np{t}:")
            elif ph >= prb_skip:
                post = ["s_mov_b64 vcc, s[96:97]", f"s_cmp_eq_u32 vcc_hi, s{S_TAG}", f"s_cselect_b32 vcc_lo, vcc_lo, s{S_TAG}", f"s_cmp_lg_u32 vcc_lo, s{S_TAG}",
                        "s_subb_u32 s98, s98, 0" if t & 1 else "s_addc_u32 s98, s98, 0"]
            if post: d["text"] += "\n" + "\n".join(post)
    vl = []
    for n in range(10):
        for t in range(8):
            br, Tn = (0, n) if n < 2 else (1, n - 2)
            pre, so, imm = addr(br, 8 * Tn + t, 0)
            after = {0: "q_summed", 1: "wo_done", 2: "qkA0", 3: "qkA1"}.get(n, f"perm{n-4}_{t//2}")
            vl.append(dict(text=f"buffer_load_dwordx4 {vr(RING+32*(n%4)+4*t)}, v{V_V}, {srd(SRD_VB if br else SRD_VA)}, {so} offen offset:{imm} {pol}", name=f"V{n}_{t}", pre=pre, after=after))
    MLR, DECR, O1R, P2R, RR = 48, 64, 64, 128, 144
    AW, AO, AP = 32, 64, 80
    V_ML, V_O1C, V_P2L, V_OUT = 12, 13, 8, 9
    def ml_(br): return [f"buffer_load_dwordx4 {vr(MLR+4*s)}, v{V_ML}, {srd(SRD_WS)}, {f's{S_C4000}' if br else '0'} offen offset:{16*s} sc1" for s in range(4)]
    decpoll = [f"s_mov_b32 s{S_T2}, {WS_DEC}", f"buffer_load_dwordx4 {vr(DECR)}, off, {srd(SRD_WS)}, s{S_T2} sc1"] if probe else []
    def o1_(br, reg): return [f"buffer_load_dwordx4 {reg(4*s)}, v{V_O1C}, {srd(SRD_WS)}, {f's{S_C80000}' if br else '0'} offen offset:{512*s} sc1" for s in range(4)]
    def p2_(reg): return [f"buffer_load_dwordx4 {reg(4*i)}, v{V_P2L}, {srd(SRD_WS)}, {so} offen sc1" for i, so in enumerate(("0", f"s{S_C4000}", f"s{S_C8000}", f"s{S_CC000}"))]
    mla = [dict(text="\n".join(flav(o1_(0, lambda o: ar(AO + o)), "") + flav(ml_(0), "")), w=0, nops=8, name="MLA", after="pubA")]
    PLR, V_PL = 68, 72
    assert probe
    plpoll = [f"buffer_load_dwordx4 {vr(PLR)}, v{V_PL}, {srd(SRD_WS)}, 0 offen sc1"]
    if not stage2: plpoll = []
    mlb = [dict(text="\n".join(decpoll + flav(plpoll + ml_(1), "")), w=0, nops=5 + len(plpoll), name="MLB", after="pl_addr" if stage2 else "atail")]
    warm = [dict(text="\n".join([f"s_cmp_lg_u32 s{S_WAVE}, 0", "s_cbranch_scc1 L_nowarm", f"buffer_load_ushort a1, v{V_OUT}, {srd(SRD_OUT)}, 0 offen",
                                 f"s_cmp_eq_u32 s{S_BR}, 0", "s_cbranch_scc1 L_nowarm"] + p2_(lambda o: ar(AP + o)) + ["L_nowarm:"]), w=0, nops=0, after="tail_setup")]
    vs = vl[:mlpoll_at] + mla + vl[mlpoll_at:mlb_at] + mlb + vl[mlb_at:warm_at] + warm + vl[warm_at:] + wol_late
    if fb:
        f0, Ft_, Fl_, thr, every = fb
        nv = sum(1 for d in vs if d.get("w", 1) == 1)
        out = []; k = 0; pend = None
        for d in vs:
            out.append(d)
            if d.get("w", 1) != 1: continue
            if k > f0 + Fl_: d["F"], d["Ft"] = Fl_, Ft_
            if pend is not None and k == pend + Fl_:
                d["need"] = f"PG{pend}"
                d["text"] += "\n" + "\n".join([f"v_cmp_le_u32 vcc, {pend + 1}, v{V_K}", "s_bcnt1_i32_b32 vcc_hi, vcc_lo", "s_cmp_ge_u32 vcc_hi, s99", "s_cselect_b64 vcc, -1, 0"])
                pend = None
            if k >= f0 and (k - f0) % every == 0 and k + Fl_ + 2 < nv:
                out.append(dict(text="\n".join([f"v_mov_b32 v{V_K}, {k + 1}", "s_mov_b64 exec, 1", f"buffer_store_byte v{V_K}, off, {srd(SRD_WS)}, s97", "s_mov_b64 exec, -1",
                                                f"buffer_load_ubyte v{V_K}, v0, {srd(SRD_WS)}, s96 offen nt"]), w=0, nops=2, name=f"PG{k}", after="pg_addr"))
                pend = k
            k += 1
        vs = out
    for d in stream + vs: S.ld(**d)

    c([f"s_lshr_b32 s{S_BR}, s2, 7", f"s_mul_i32 s10, s{S_BR}, 40", f"s_load_dwordx2 s[{SRD_WS}:{SRD_WS+1}], s[0:1], 96",
       f"s_load_dwordx2 s[{SRD_X}:{SRD_X+1}], s[0:1], s10", f"s_load_dwordx2 s[{SRD_WQ}:{SRD_WQ+1}], s[0:1], s10 offset:24", f"s_load_dwordx2 s[{SRD_WO}:{SRD_WO+1}], s[0:1], 32",
       f"s_load_dwordx2 s[{SRD_KA}:{SRD_KA+1}], s[0:1], 8", f"s_load_dwordx2 s[{SRD_VA}:{SRD_VA+1}], s[0:1], 16", f"s_load_dwordx2 s[{SRD_VB}:{SRD_VB+1}], s[0:1], 56",
       f"s_load_dwordx2 s[{SRD_OUT}:{SRD_OUT+1}], s[0:1], 80"])
    c("v_and_b32 v5, 15, v0"); c(f"v_lshl_add_u32 v{V_V}, v5, 4, s8")
    for bit, pos in ((4, PL[0]), (5, PL[1])):
        c(f"v_bfe_u32 v7, v0, {bit}, 1"); c(f"v_lshl_or_b32 v{V_V}, v7, {pos}, v{V_V}")
    c(f"s_or_b32 s{S_RA}, s{S_RB}, 0xC0000")
    for n, sz in ((SRD_WQ, 0x400000), (SRD_X, 8192), (SRD_KA, 0x4000000), (SRD_VA, 0x4000000), (SRD_VB, 0x4000000), (SRD_WO, 0x400000), (SRD_WS, WS_BYTES), (SRD_OUT, 16384)):
        c(f"s_mov_b32 s{n+2}, {sz}"); c(f"s_mov_b32 s{n+3}, 0x20000")
    c("s_bfe_u32 s8, s2, 0x20005"); c(f"s_lshl2_add_u32 s{S_HEAD}, s{S_KVH}, s8")
    c(f"s_lshl2_add_u32 s8, s{S_S}, s{S_WAVE}")
    c("s_lshl_b32 s10, s8, 18"); c(f"s_lshl_b32 s{S_T}, s{S_HEAD}, 8"); c(f"s_or_b32 s10, s10, s{S_T}")
    c(f"v_lshlrev_b32 v{V_WQ}, 16, v6"); c(f"v_lshl_or_b32 v{V_WQ}, v5, 4, v{V_WQ}"); c(f"v_add_u32 v{V_WQ}, s10, v{V_WQ}")
    c("s_lshl_b32 s8, s8, 6"); c("v_and_b32 v7, 7, v0")
    c(f"v_lshlrev_b32 v{V_X}, 10, v7"); c(f"v_lshl_or_b32 v{V_X}, v6, 4, v{V_X}"); c(f"v_add_u32 v{V_X}, s8, v{V_X}")
    c([f"s_getpc_b64 s[{S_PC}:{S_PC+1}]", "L_pc:"])
    c(f"s_lshl_b32 s8, s{S_WAVE}, 13"); c("v_lshl_add_u32 v10, v0, 7, s8"); c("v_min_u32 v10, L_code_end-L_pc-4, v10")
    c(["s_waitcnt lgkmcnt(0)", f"s_mov_b32 s8, {WS_E}", f"s_load_dword s{S_TAG}, s[{SRD_WS}:{SRD_WS+1}], s8"], mark="setup")
    c(f"s_lshl2_add_u32 s{S_E8}, s{S_BR}, s{S_S}")
    c(f"s_lshl_b32 s10, s{S_HEAD}, 17"); c(f"s_lshl_b32 s{S_T}, s{S_E8}, 7"); c(f"s_or_b32 s10, s10, s{S_T}"); c(f"s_lshl_b32 s{S_T}, s{S_WAVE}, 15"); c(f"s_or_b32 s10, s10, s{S_T}")
    c("v_lshrrev_b32 v16, 3, v0"); c(f"v_lshlrev_b32 v{V_WO}, 10, v16"); c(f"v_lshl_or_b32 v{V_WO}, v7, 4, v{V_WO}"); c(f"v_add_u32 v{V_WO}, s10, v{V_WO}", mark="wo_addr")
    c(f"s_mov_b32 s{S_SELLO}, 0x05040100"); c(f"s_mov_b32 s{S_SELHI}, 0x07060302")
    for k in range(4): c(f"s_mov_b32 s{S_INS+k}, {0x07060500 + k:#x}")
    c(f"s_mov_b32 s{S_C}, {f32((128 ** -0.5) * 1.4426950408889634):#x}"); c(f"s_mov_b32 s{S_CNT}, 0x3ffff")
    c(f"s_mov_b32 s{S_C4000}, 0x4000"); c(f"s_mov_b32 s{S_C8000}, 0x8000"); c(f"s_mov_b32 s{S_CC000}, 0xc000"); c(f"s_mov_b32 s{S_C80000}, 0x80000")
    c("v_lshrrev_b32 v4, 5, v0"); c("v_and_b32 v5, 31, v0"); c("v_lshlrev_b32 v5, 4, v5")
    c(f"v_mul_u32_u24 v12, {OH}, v7"); c("v_lshl_add_u32 v12, v6, 7, v12"); c(f"s_mul_i32 s8, s{S_WAVE}, {QW}"); c("v_add_u32 v12, s8, v12")
    c(f"v_mul_u32_u24 v14, {OH}, v4"); c("v_add_u32 v14, v14, v5"); c(f"s_mul_i32 s8, s{S_WAVE}, {2*OH}"); c("v_add_u32 v14, s8, v14")
    c(f"s_lshl_b32 s8, s{S_BR}, 19"); c(f"s_lshl_b32 s10, s{S_HEAD}, 11"); c("s_or_b32 s8, s8, s10"); c(f"s_lshl_b32 s10, s{S_S}, 9"); c("s_or_b32 s8, s8, s10"); c(f"s_add_u32 s8, s8, {WS_Q}")
    c("v_lshl_or_b32 v17, v4, 16, v5"); c("v_add_u32 v17, s8, v17"); c(f"s_lshl_b32 s10, s{S_WAVE}, 17"); c("v_add_u32 v13, s10, v17")
    c(f"s_getreg_b32 s{S_XQ}, hwreg(HW_REG_XCC_ID, 0, 4)"); c(f"s_lshl_b32 s{S_XQ}, s{S_XQ}, 20"); c(f"s_add_u32 s{S_XQ}, s{S_XQ}, {WS_QX - WS_Q}")
    c(f"s_mov_b32 s{S_FOR}, {0 if fast else 1}")
    c(f"s_lshl_b32 s8, s{S_B}, 16"); c(f"s_lshl_b32 s10, s{S_KVH}, 13"); c("s_or_b32 s8, s8, s10"); c(f"s_lshl_b32 s10, s{S_WAVE}, 11"); c("s_or_b32 s8, s8, s10"); c(f"s_add_u32 s8, s8, {WS_Q}")
    c(f"v_lshl_or_b32 v{V_QP}, v4, 19, v5"); c(f"v_add_u32 v{V_QP}, s8, v{V_QP}")
    c(["s_waitcnt lgkmcnt(0)", f"s_add_u32 s{S_TAG}, s{S_TAG}, 0x9E3779B1"], need="X")
    for k in range(1, 4): c(f"s_lshr_b32 s{S_TAG+k}, s{S_TAG}, {8*k}")
    c(f"s_or_b32 s99, s2, s{S_WAVE}"); c("s_mov_b32 s98, 0")
    c(f"v_mov_b32 v{V_TAG}, s{S_TAG}", mark="tag")
    def transpose(dst, src, nm, mk=None):
        for p in range(4):
            for e in range(8):
                c(f"v_perm_b32 v{dst+4*e+p}, v{src+4*(2*p+1)+e//2}, v{src+4*(2*p)+e//2}, s{S_SELHI if e & 1 else S_SELLO}", need=f"{nm}{2*p+1}", mark=(f"{mk}{p}" if (mk and e == 7) else None))
    transpose(WQT, WQD, "WQ")
    for e in range(8): c(f"{MFMA} {vr(QD+4*e)}, {vr(WQT+4*e)}, {vr(XD)}, 0")
    blk = ["s_mov_b32 exec_lo, 0x00ff00ff", "s_mov_b32 exec_hi, 0x00ff00ff"] + [f"ds_write_b128 v12, {vr(QD+4*e)} offset:{L_QP+16*e}" for e in range(8)]
    blk += ["s_mov_b64 exec, -1", "s_waitcnt lgkmcnt(0)", "s_barrier"] + [f"ds_read_b128 {vr(64+4*w)}, v14 offset:{L_QP+QW*w}" for w in range(4)]
    c(blk)
    def pg_addr(line, own):
        return [f"s_lshl2_add_u32 s{line}, s{S_KVH}, s{S_WAVE}", f"s_lshl_b32 s{line}, s{line}, 8", f"s_add_u32 s{line}, s{line}, {WS_PG}", f"s_lshr_b32 s{own}, s2, 3", f"s_add_u32 s{own}, s{own}, s{line}"]
    if fb: c(pg_addr(8, 10) + ["v_mov_b32 v92, 0", "s_mov_b64 exec, 1", f"buffer_store_byte v92, off, {srd(SRD_WS)}, s10", "s_mov_b64 exec, -1"], stores=1, bias=-wstore)
    c(["s_waitcnt lgkmcnt(0)"] + sum4(80, 64) + tag4(88, 80))
    c([f"buffer_store_dwordx4 {vr(88)}, v13, {srd(SRD_WS)}, s{S_XQ} offen"] + stamp(), mark="qproj_done", stores=1)
    c(f"s_load_dwordx2 s[{SRD_WQ}:{SRD_WQ+1}], s[0:1], 72")
    c(f"s_lshl2_add_u32 s10, s{S_HEAD}, s{S_WAVE}"); c("s_lshl_b32 s10, s10, 1"); c("v_add_u32 v7, s10, v4")
    c(f"v_lshlrev_b32 v{V_ML}, 6, v7"); c(f"v_add_u32 v{V_ML}, {WS_ML}, v{V_ML}")
    c(f"v_lshl_or_b32 v{V_O1C}, v7, 11, v5"); c(f"v_add_u32 v{V_O1C}, {WS_O1}, v{V_O1C}")
    c("v_bfe_u32 v7, v0, 3, 2"); c("v_lshlrev_b32 v10, 10, v4"); c("v_lshl_or_b32 v10, v7, 6, v10"); c("v_and_b32 v7, 7, v0"); c("v_lshl_or_b32 v10, v7, 1, v10")
    c(f"s_lshl_b32 s8, s{S_WAVE}, 8"); c("v_add_u32 v10, s8, v10")
    c(f"s_lshl3_add_u32 s10, s{S_HEAD}, s{S_E8}"); c(f"s_lshl2_add_u32 s10, s10, s{S_WAVE}"); c(f"s_lshl_b32 s{S_P2S}, s10, 9"); c(f"s_add_u32 s{S_P2S+1}, s{S_P2S}, 0x80000")
    if stage2: c(f"s_add_u32 s{S_P2S}, s{S_P2S}, {WS_PL}")
    assert WS_P2 == 0
    c(f"s_lshl2_add_u32 s{S_T}, s{S_HEAD}, s{S_S}")
    c(f"s_lshl_b32 s10, s{S_T}, 7"); c(f"s_lshl_b32 s8, s{S_BR}, 19"); c("s_or_b32 s10, s10, s8")
    c(f"v_lshlrev_b32 v{V_P2L}, 16, v16"); c(f"v_lshl_or_b32 v{V_P2L}, v7, 4, v{V_P2L}"); c(f"v_add_u32 v{V_P2L}, s10, v{V_P2L}")
    c(f"s_lshr_b32 s10, s{S_T}, 4"); c("s_lshl_b32 s10, s10, 7"); c(f"s_and_b32 s8, s{S_T}, 1"); c("s_lshl1_add_u32 s10, s8, s10")
    c(f"s_and_b32 s8, s{S_T}, 12"); c("s_or_b32 s10, s10, s8"); c(f"s_lshl_b32 s8, s{S_BR}, 10"); c("s_or_b32 s10, s10, s8")
    c(f"s_bfe_u32 s8, s{S_T}, 0x10001"); c("s_lshl_b32 s8, s8, 13"); c("s_or_b32 s10, s10, s8")
    c(f"v_lshlrev_b32 v{V_OUT}, 11, v6"); c(f"v_lshl_or_b32 v{V_OUT}, v7, 4, v{V_OUT}"); c(f"v_add_u32 v{V_OUT}, s10, v{V_OUT}")
    c(f"v_mul_u32_u24 v14, {WCS}, v7"); c("v_lshl_add_u32 v14, v16, 3, v14"); c(f"s_mul_i32 s8, s{S_WAVE}, {WK}"); c("v_add_u32 v14, s8, v14")
    c("v_and_b32 v7, 3, v0"); c("v_lshlrev_b32 v7, 8, v7"); c("v_lshl_or_b32 v7, v6, 5, v7"); c("v_bfe_u32 v5, v0, 2, 1"); c("v_lshl_or_b32 v7, v5, 4, v7")
    def wo_put(br, src, tmp):
        o = []
        for e in range(8):
            for p in range(2): o.append(f"v_perm_b32 v{tmp+2*e+p}, v{src+4*(2*p+1)+e//2}, v{src+4*(2*p)+e//2}, s{S_SELHI if e & 1 else S_SELLO}")
            o.append(f"ds_write_b64 v14, {vr(tmp+2*e, 2)} offset:{L_W+4*WK*br+8*WCS*e}")
        return o
    for l in wo_put(0, WOD, 96): c(l, need="WO3")
    c([], mark="wo_done")
    qchk = check_ops([QP + 4 * i for i in range(4)], DT)
    c(["L_chk_q:"] + qchk + ["s_cbranch_vccnz L_retry_q", "L_ok_q:"] + stamp(), need="QP3")
    T(["L_retry_q:"] + giveup("q") + ["s_sleep 4", f"s_and_b32 s8, s{S_CNT}, 3", "s_cbranch_scc0 L_q_far", "L_q_near:"] + qpoll + ["s_waitcnt vmcnt(0)", "s_branch L_chk_q", "L_q_far:"])
    for w in range(4): T([f"s_add_u32 s8, s{S_XQ}, {w << 17}", f"buffer_load_dwordx4 {vr(64+4*w)}, v17, {srd(SRD_WS)}, s8 offen sc1"])
    T(["s_waitcnt vmcnt(0)"] + check_ops([64, 68, 72, 76], DT) + ["s_cbranch_vccnz L_q_near"])
    for w in range(4): T([f"s_mov_b32 s8, {w << 17}", f"buffer_store_dwordx4 {vr(64+4*w)}, v17, {srd(SRD_WS)}, s8 offen sc1"])
    T(qpoll_("0") + ["s_waitcnt vmcnt(0)"] + qchk + ["s_cbranch_vccnz L_q_near"] + qpoll + ["s_waitcnt vmcnt(0)"] + qchk
      + ["s_cbranch_vccz L_ok_q", f"s_mov_b32 s{S_FOR}, 1"] + qpoll_("0") + ["s_waitcnt vmcnt(0)", "s_branch L_ok_q"])
    c(sum4(DT, QP), mark="q_summed")
    c(f"v_cvt_pk_bf16_f32 v{DT+4}, v{DT}, v{DT+1}"); c(f"v_cvt_pk_bf16_f32 v{DT+5}, v{DT+2}, v{DT+3}")
    c(f"v_mov_b32 v{DT+6}, s{S_FOR}"); c(f"s_lshl_b32 s8, s{S_WAVE}, 2"); c(f"v_mov_b32 v{DT+7}, s8"); c(f"v_mov_b32 v{DT+12}, 0")
    blk = [f"ds_write_b16 v10, v{DT+4} offset:{L_Q}", f"ds_write_b16_d16_hi v10, v{DT+4} offset:{L_Q+16}", f"ds_write_b16 v10, v{DT+5} offset:{L_Q+32}",
           f"ds_write_b16_d16_hi v10, v{DT+5} offset:{L_Q+48}", f"ds_write_b32 v{DT+7}, v{DT+6} offset:{L_F}", "s_waitcnt lgkmcnt(0)", "s_barrier"]
    blk += [f"ds_read_b128 {vr(QA+8*br+4*L)}, v7 offset:{L_Q+1024*br+128*L}" for br in range(2) for L in range(2)] + [f"ds_read_b128 {vr(DT+8)}, v{DT+12} offset:{L_F}"]
    c(blk)
    c("s_waitcnt lgkmcnt(0)")
    c(f"v_or3_b32 v{DT+8}, v{DT+8}, v{DT+9}, v{DT+10}"); c(f"v_or_b32 v{DT+8}, v{DT+8}, v{DT+11}"); c(f"v_readfirstlane_b32 s{S_FOR}, v{DT+8}")
    if fb:
        blk = pg_addr(96, 97) + [f"s_mov_b32 s99, {fb[3] + (sb[0] + sb[1]) // 2}"]
        for bit, dl in ((0, sb[0]), (2, sb[1])):
            if dl: blk += [f"s_bitcmp1_b32 s2, {bit}", f"s_cselect_b32 s8, {dl}, 0", "s_sub_u32 s99, s99, s8"]
        c(blk + ["s_mov_b64 vcc, 0"], mark="pg_addr")
    def qk(br, Tn):
        q = QB if br else QA
        sb_ = (SB if br else SA) + 8 * Tn
        nm = f"K{'B' if br else 'A'}{Tn}_"
        for Tp in range(4):
            for L in range(2):
                i = 2 * Tp + L
                kreg = ar(32 * Tn + 4 * i) if br else vr(RING + 64 + 32 * Tn + 4 * i)
                c(f"{MFMA} {vr(DT+4*Tp)}, {kreg}, {vr(q+4*L)}, {'0' if L == 0 else vr(DT+4*Tp)}", need=nm + str(i), mark=(f"qkA{Tn}" if (not br and i == 7) else None))
        for Tp in range(4):
            for u in range(2):
                d = DT + 4 * Tp + 2 * u
                c(f"v_add_f32_dpp v{sb_+2*Tp+u}, v{d+1}, v{d} row_shl:4 row_mask:0xf bank_mask:0xf bound_ctrl:0")
        m = 5 if br else 4
        for i in range(4):
            c(f"v_max_f32 v{m}, v{sb_}, v{sb_+1}" if (Tn == 0 and i == 0) else f"v_max3_f32 v{m}, v{sb_+2*i}, v{sb_+2*i+1}, v{m}")
    for Tn in range(8): qk(1, Tn)
    for Tn in range(2): qk(0, Tn)
    for sw in ("v_permlane16_swap_b32", "v_permlane32_swap_b32"):
        c("v_mov_b32 v7, v4"); c("v_mov_b32 v10, v5"); c(f"{sw} v7, v4"); c(f"{sw} v10, v5"); c("v_max_f32 v4, v4, v7"); c("v_max_f32 v5, v5, v10")
    c("v_and_b32 v11, 3, v0"); c("v_lshlrev_b32 v11, 4, v11"); c(f"v_add_u32 v11, {L_M}, v11"); c(f"s_lshl_b32 s8, s{S_WAVE}, 2"); c("v_add_u32 v7, s8, v11")
    c(["s_mov_b64 exec, 15", "ds_write2_b32 v7, v4, v5 offset0:0 offset1:16", "s_mov_b64 exec, -1", "s_waitcnt lgkmcnt(0)", "s_barrier",
       f"ds_read_b128 {vr(DT)}, v11", f"ds_read_b128 {vr(DT+4)}, v11 offset:64"] + stamp())
    for i in range(4): c(f"v_mov_b32 v{DT+8+i}, 0x3f803f80")
    c("s_waitcnt lgkmcnt(0)")
    for br in range(2):
        d = DT + 4 * br; m = 4 + br
        c(f"v_max3_f32 v{m}, v{d}, v{d+1}, v{d+2}"); c(f"v_max_f32 v{m}, v{m}, v{d+3}"); c(f"v_mul_f32 v{m}, s{S_C}, v{m}")
    for br, nT in ((0, 2), (1, 8)):
        base = SB if br else SA
        for Tn in range(nT):
            sb_ = base + 8 * Tn
            for t in range(8): c(f"v_fma_f32 v{sb_+t}, v{sb_+t}, s{S_C}, -v{4+br}")
            for t in range(8): c(f"v_exp_f32 v{sb_+t}, v{sb_+t}")
            for p in range(4): c(f"v_cvt_pk_bf16_f32 v{base+4*Tn+p}, v{sb_+2*p}, v{sb_+2*p+1}")
        lreg = LB if br else LA
        for Tn in range(nT): c(f"{MFMA} {vr(lreg)}, {vr(DT+8)}, {vr(base+4*Tn)}, {'0' if Tn == 0 else vr(lreg)}")
    c("v_and_b32 v10, 3, v0"); c(f"v_mul_u32_u24 v10, {OH}, v10"); c("v_lshl_add_u32 v10, v6, 7, v10"); c(f"s_mul_i32 s8, s{S_WAVE}, {OW}"); c("v_add_u32 v10, s8, v10")
    c(f"s_mul_i32 s8, s{S_WAVE}, {OH}"); c("v_lshl_add_u32 v11, v0, 4, s8")
    c([f"s_cmp_eq_u32 s{S_WAVE}, 0", "s_cselect_b32 s8, 1.0, 0"])
    for br in range(2):
        lreg = LB if br else LA
        c(f"v_and_b32 v{lreg}, 0xffffff00, v{4+br}"); c(f"v_sub_f32 v{lreg+1}, v{4+br}, v{lreg}"); c(f"v_mul_f32 v{lreg}, s8, v{lreg}"); c(f"v_mul_f32 v{lreg+1}, s8, v{lreg+1}")
    c(["s_mov_b64 exec, 15", f"ds_write_b128 v10, {vr(LA)} offset:{L_OA+512}", f"ds_write_b128 v10, {vr(LB)} offset:{L_OA+528}", "s_mov_b64 exec, -1"])
    c(f"s_lshl2_add_u32 s8, s{S_KVH}, s{S_WAVE}"); c(f"s_lshl3_add_u32 s8, s8, s{S_B}"); c(f"s_lshl2_add_u32 s8, s8, s{S_S}")
    c("s_lshl_b32 s10, s8, 9"); c(f"s_add_u32 s10, s10, {WS_O1}"); c("v_lshl_add_u32 v7, v0, 4, s10")
    c("s_lshl_b32 s8, s8, 4"); c(f"s_add_u32 s8, s8, {WS_ML}"); c("v_and_b32 v4, 1, v0")
    c(["s_mov_b32 exec_lo, 0", "v_lshl_add_u32 v7, v4, 14, s8", "s_mov_b32 exec_lo, -1"])
    c([f"s_mov_b32 s{S_MASK}, 0x000f000f", f"s_mov_b32 s{S_MASK+1}, 0x000f000f"] + stamp())
    def pv(n):
        br, Tn = (0, n) if n < 2 else (1, n - 2)
        transpose(VT, RING + 32 * (n % 4), f"V{n}_", f"perm{n}_")
        for e in range(8): c(f"{MFMA} {vr(OACC+4*e)}, {vr(VT+4*e)}, {vr((SB if br else SA) + 4 * Tn)}, {'0' if Tn == 0 else vr(OACC+4*e)}")
    def combine(br):
        lo = L_OB if br else L_OA
        blk = [f"s_mov_b64 exec, s[{S_MASK}:{S_MASK+1}]"] + [f"ds_write_b128 v10, {vr(OACC+4*e)} offset:{lo+16*e}" for e in range(8)]
        blk += ["s_mov_b32 exec_lo, -1", f"s_mov_b32 exec_hi, {0 if br else 3}", f"s_cmp_lg_u32 s{S_FOR}, 0", "s_waitcnt lgkmcnt(0)", "s_barrier"]
        blk += [f"ds_read_b128 {vr(VT+4*w)}, v11 offset:{lo+OW*w}" for w in range(4)] + ["s_waitcnt lgkmcnt(0)"] + sum4(VT + 16, VT) + tag4(VT + 24, VT + 16)
        st = f"buffer_store_dwordx4 {vr(VT+24)}, v7, {srd(SRD_WS)}, {f's{S_C80000}' if br else '0'} offen"
        T([f"L_far_st{br}:", f"{st} sc1", f"s_branch L_st_done{br}"])
        return blk + [f"s_cbranch_scc1 L_far_st{br}", st, f"L_st_done{br}:", "s_mov_b64 exec, -1"]
    def outproj(br, src, t):
        o = [f"v_pk_mul_f32 {vr(t+16+i,2)}, {vr(src+i,2)}, {vr(MLR,2)} op_sel_hi:[1,0]" for i in (0, 2)]
        for s in range(1, 4): o += [f"v_pk_fma_f32 {vr(t+16+i,2)}, {vr(src+4*s+i,2)}, {vr(MLR+4*s,2)}, {vr(t+16+i,2)} op_sel_hi:[1,0,1]" for i in (0, 2)]
        o += [f"v_cvt_pk_bf16_f32 v{t+20}, v{t+16}, v{t+17}", f"v_cvt_pk_bf16_f32 v{t+21}, v{t+18}, v{t+19}", f"ds_write_b64 v4, {vr(t+20,2)}", "s_waitcnt lgkmcnt(0)", "s_barrier"]
        for kc in range(4): o += [f"ds_read_b128 {vr(t+4*kc)}, v5 offset:{L_O+64*kc}", f"ds_read_b128 {ar(AW+4*kc)}, v6 offset:{L_W+4*WK*br+WK*kc}"]
        for kc in range(4): o += [f"s_waitcnt lgkmcnt({0 if stamps else 6-2*kc})", f"{MFMA} {vr(t+16)}, {vr(t+4*kc)}, {ar(AW+4*kc)}, {'0' if kc == 0 else vr(t+16)}"]
        st = f"buffer_store_dwordx4 {vr(t+20)}, v{12 if br else t}, {srd(SRD_WS)}, s{S_P2S+br} offen"
        o += ([] if br else [f"v_lshlrev_b32 v{t}, 4, v0"]) + ["s_mov_b32 exec_hi, 0"]
        if br or not stage2: return o + tag4(t + 20, t + 16) + [st + " sc1", "s_mov_b32 exec_hi, -1"]
        T(["L_far_pl:", st + " sc1", "s_branch L_pl_done"])
        return o + [f"s_cmp_lg_u32 s{S_FOR}, 0"] + tag4(t + 20, t + 16) + ["s_cbranch_scc1 L_far_pl", st, "L_pl_done:", "s_mov_b32 exec_hi, -1"]
    def weights(t):
        for s in range(4):
            c(f"v_and_b32 v{MLR+4*s}, 0xffffff00, v{MLR+4*s}"); c(f"v_and_b32 v{MLR+4*s+1}, 0xffffff00, v{MLR+4*s+1}"); c(f"v_add_f32 v{MLR+4*s}, v{MLR+4*s}, v{MLR+4*s+1}")
        c(f"v_max3_f32 v{t}, v{MLR}, v{MLR+4}, v{MLR+8}"); c(f"v_max_f32 v{t}, v{t}, v{MLR+12}")
        for s in range(4): c(f"v_sub_f32 v{MLR+4*s}, v{MLR+4*s}, v{t}")
        for s in range(4): c(f"v_exp_f32 v{MLR+4*s}, v{MLR+4*s}")
        c(f"v_mul_f32 v{t}, v{MLR}, v{MLR+2}")
        for s in range(1, 4): c(f"v_fmac_f32 v{t}, v{MLR+4*s}, v{MLR+4*s+2}")
        c(f"v_rcp_f32 v{t}, v{t}")
        for s in range(4): c(f"v_mul_f32 v{MLR+4*s}, v{MLR+4*s}, v{t}")
    SV = ["s_mov_b32 s98, vcc_lo"]; RV = ["s_mov_b32 vcc_lo, s98", "s_mov_b32 vcc_hi, s98"]
    pv(0); pv(1)
    c(combine(0) + stamp(), stores=1, mark="pubA")
    c("v_lshrrev_b32 v4, 5, v0"); c("v_mul_u32_u24 v4, 272, v4"); c("v_and_b32 v5, 31, v0"); c("v_lshl_add_u32 v4, v5, 3, v4")
    c(f"s_mul_i32 s8, s{S_WAVE}, 544"); c(f"s_add_u32 s8, s8, {L_O}"); c("v_add_u32 v4, s8, v4")
    c("v_and_b32 v5, 7, v0"); c("v_mul_u32_u24 v5, 272, v5"); c("v_lshl_add_u32 v5, v6, 4, v5")
    c(f"s_mul_i32 s8, s{S_WAVE}, {16*WCS}"); c(["v_lshl_add_u32 v6, v6, 4, s8", f"v_and_b32 v{VT}, 15, v0", f"v_mul_u32_u24 v{VT}, {WCS}, v{VT}", f"v_add_u32 v6, v6, v{VT}"])
    for n in range(2, 10):
        pv(n)
        if n == mlt:
            for i in range(16): c(f"v_accvgpr_read_b32 v{VT+i}, a{AO+i}", need="MLA")
            c(SV + ["L_chk_a1:"] + check_ops([MLR + 4 * i for i in range(4)] + [VT + 4 * s for s in range(4)], VT + 16) + ["s_cbranch_vccnz L_retry_a1", "L_ok_a1:"] + RV)
            slow_retry("a1", ml_(0) + o1_(0, lambda o: vr(VT + o)))
            weights(VT + 16)
            if a_bias: c([], bias=-a_bias)
            c(outproj(0, VT, VT), stores=1, mark="atail")
        if n == 4 and stage2:
            assert mlt <= 4
            c(f"s_and_b32 s8, s{S_HEAD}, 3"); c(f"s_lshl2_add_u32 s8, s{S_E8}, s8"); c(f"s_lshl2_add_u32 s8, s8, s{S_WAVE}"); c("s_lshl_b32 s8, s8, 7")
            c(f"s_lshl_b32 s10, s{S_KVH}, 16"); c(f"s_or_b32 s{S_P2S}, s8, s10"); c(f"s_add_u32 s8, s{S_P2S}, {WS_PL}")
            c(f"v_and_b32 v{V_PL+1}, 7, v0"); c(f"v_lshlrev_b32 v{V_PL+1}, 4, v{V_PL+1}"); c(f"v_bfe_u32 v{V_PL}, v0, 3, 2"); c(f"v_lshl_or_b32 v{V_PL}, v{V_PL}, 14, v{V_PL+1}")
            c(f"v_add_u32 v{V_PL}, s8, v{V_PL}", mark="pl_addr")
        if n == mltb:
            c(SV + ["L_chk_ml:"] + check_ops([MLR + 4 * i for i in range(4)] + [DECR, PLR if stage2 else DECR], VT) + ["s_cbranch_vccnz L_retry_ml", "L_ok_ml:"] + RV, need="MLB")
            slow_retry("ml", ml_(1) + decpoll + plpoll)
            if stage2:
                for i in range(4): c(f"v_add_f32_dpp v{VT+i}, v{PLR+i}, v{PLR+i} row_ror:8 row_mask:0xf bank_mask:0xf")
                for i in range(4): c(f"v_mov_b32 v{VT+4+i}, v{VT+i}")
                for i in range(4): c(f"v_permlane16_swap_b32 v{VT+4+i}, v{VT+i}")
                for i in (0, 2): c(f"v_pk_add_f32 {vr(VT+i,2)}, {vr(VT+i,2)}, {vr(VT+4+i,2)}")
                c(tag4(PLR, VT))
                for i in range(4): c(f"v_accvgpr_write_b32 a{96+i}, v{PLR+i}")
            c("v_lshlrev_b32 v12, 4, v0")
            if probe:
                c(f"v_readfirstlane_b32 s8, v{DECR}")
                c(["s_bfe_u32 s10, s8, 0x3000c", f"s_and_b32 s{S_T}, s2, 3", f"s_add_u32 s{S_T}, s{S_T}, s10", f"s_xor_b32 s10, s10, s{S_T}", "s_lshl_b32 s10, s10, 6",
                   "s_xor_b32 s8, s8, s10", "s_and_b32 s8, s8, 0x100", "s_lshl_b32 s10, s8, 5", f"v_xor_b32 v{V_P2L}, s10, v{V_P2L}", "s_lshl_b32 s10, s8, 1", f"v_xor_b32 v{V_OUT}, s10, v{V_OUT}"])
            for i in range(4): c(f"v_not_b32 v{O1R+4*i}, v{V_TAG}")
            assert n >= 5
            c([f"s_cmp_eq_u32 s{S_FOR}, 0", f"s_cselect_b32 s{S_T}, 63, 0"], mark="tail_setup")
            weights(VT)
    c(stamp() + combine(1) + stamp(), stores=1, bias=-100)
    S.run()
    wo_younger = len(S.ops) - S.seq["WL3"]
    def poll(nm, loads, regs, tmp, depth, entry, extra=()):
        O.extend(entry + [f"L_retry_{nm}:", "s_mov_b64 exec, vcc"] + giveup(nm) + list(extra) + [f"L_poll_{nm}:"] + loads + [f"s_waitcnt vmcnt({len(loads)*(depth-1)})", f"L_chk_{nm}:"]
                 + check_ops(regs, tmp) + [f"s_cbranch_vccnz L_retry_{nm}", f"L_ok_{nm}:", "s_mov_b64 exec, -1"])
    o1l = o1_(1, lambda o: vr(O1R + o))
    astore = ["s_mov_b64 exec, 0xff", f"buffer_store_dwordx4 {ar(96)}, v12, {srd(SRD_WS)}, s{S_P2S} offen sc1", "s_mov_b64 exec, -1"] if stage2 else []
    O.extend(flav(o1l, "nt")); A(f"s_waitcnt vmcnt({4 + wo_younger})")
    O.extend(wo_put(1, WOL, WOL + 16))
    if a_store == "s7": O.extend(astore)
    poll("o1", flav(o1l, "nt"), [O1R + 4 * s for s in range(4)], 80, depth1, ["s_branch L_chk_o1"], extra=[f"s_and_b32 s8, s{S_CNT}, s{S_T}", "s_cbranch_scc0 L_far_o1"])
    T(["L_far_o1:"] + o1l + ["s_waitcnt vmcnt(0)", "s_branch L_chk_o1"])
    O.extend(stamp())
    op = outproj(1, O1R, 96)
    if a_store == "s8":
        i = op.index("s_waitcnt lgkmcnt(0)"); op = op[:i] + astore + op[i:]
    O.extend(op)
    if a_store == "s9": O.extend(astore)
    O.extend(stamp())
    A(f"s_cmp_lg_u32 s{S_WAVE}, 0"); A("s_cbranch_scc1 L_fin")
    if stage2: A(f"s_cmp_eq_u32 s{S_BR}, 0"); A("s_cbranch_scc1 L_poll_pa")
    if stage2: T(["L_retry_pa:"] + giveup("pa") + ["L_poll_pa:", p2_(lambda o: vr(RR + o))[0], "s_waitcnt vmcnt(0)"] + check_ops([RR, RR], 80) + ["s_cbranch_vccnz L_retry_pa", "s_branch L_ok_pa"])
    for i in range(4): A(f"v_not_b32 v{P2R+4*i}, v{V_TAG}")
    poll("p2", p2_(lambda o: vr(P2R + o)), [P2R + 4 * i for i in range(4)], 80, depth2, ["s_branch L_poll_p2"])
    O.extend(sum4(RR, P2R))
    A("L_ok_pa:")
    O.extend([f"v_permlane32_swap_b32 v{RR}, v{RR+2}", f"v_permlane32_swap_b32 v{RR+1}, v{RR+3}", f"v_pk_add_f32 {vr(RR,2)}, {vr(RR,2)}, {vr(RR+2,2)}",
              f"v_permlane16_swap_b32 v{RR}, v{RR+1}", f"v_add_f32 v{RR}, v{RR}, v{RR+1}", f"v_add_f32_dpp v{RR+1}, v{RR}, v{RR} row_ror:8 row_mask:0xf bank_mask:0xf",
              f"v_cvt_pk_bf16_f32 v{RR+1}, v{RR+1}, v{RR+1}", f"buffer_store_short v{RR+1}, v{V_OUT}, {srd(SRD_OUT)}, 0 offen"])
    A("s_cmp_lg_u32 s2, 0"); A("s_cbranch_scc1 L_fin")
    A(f"v_mov_b32 v4, {WS_E}"); A("s_mov_b64 exec, 1"); A(f"buffer_store_dword v{V_TAG}, v4, {srd(SRD_WS)}, 0 offen")
    A("L_fin:")
    if stamps:
        O.extend(stamp())
        A("s_waitcnt lgkmcnt(0)")
        A(f"s_lshl_b32 s8, s2, 4"); A(f"s_add_u32 s8, s8, s{S_WAVE}"); A("s_lshl_b32 s8, s8, 7"); A(f"s_add_u32 s8, s8, {64<<20}")
        A("s_mov_b64 exec, 1"); A("v_mov_b32 v4, 0")
        for i in range(nst[0]):
            A(f"v_mov_b32 v16, s{S_STAMP+2*i}"); A(f"v_mov_b32 v17, s{S_STAMP+2*i+1}")
            A(f"buffer_store_dwordx2 v[16:17], v4, {srd(SRD_WS)}, s8 offen offset:{8*i}"); A("s_nop 1")
    A("L_end:"); A("s_endpgm")
    O.extend(tail_code)
    A("L_code_end:")
    body = finalize(O)
    hdr = HEADER + f"; @launch grid=(256,1,1) block=(256,1,1) lds={LDS_BYTES}\n"
    hdr += '.amdgcn_target "amdgcn-amd-amdhsa--gfx950"\n.text\n' + f".globl {NAME}_kernel\n.p2align 8\n.type {NAME}_kernel,@function\n"
    ftr = f"""
.section .rodata,"a"
.p2align 6
.amdhsa_kernel {NAME}_kernel
  .amdhsa_next_free_vgpr 512
  .amdhsa_next_free_sgpr 102
  .amdhsa_accum_offset 256
  .amdhsa_group_segment_fixed_size 0
  .amdhsa_kernarg_size 104
  .amdhsa_user_sgpr_count 2
  .amdhsa_user_sgpr_kernarg_segment_ptr 1
  .amdhsa_system_sgpr_workgroup_id_x 1
.end_amdhsa_kernel
"""
    return hdr + "\n".join(body) + ftr, nst[0]

if __name__ == "__main__":
    kw = {}
    for a in sys.argv[2:]:
        k, v = a.split("="); kw[k] = eval(v)
    txt, n = gen(**kw)
    open(sys.argv[1], "w").write(txt)
    print(sys.argv[1], "stamps:", n, "lines:", txt.count("\n"))
```

```python
import sys, struct
from asmlib import finalize
NAME = "concat_heads__sliding_block_cached__gqa_block_cached__decode"
HEADER = open("cdna_kernels/" + NAME + ".s.ref").read().split("; Override launch geometry")[0]
def f32(x): return struct.unpack("<I", struct.pack("<f", x))[0]

WS_P2, WS_PRB, WS_E, WS_DEC, WS_PG, WS_ML, WS_Q, WS_O1, WS_QX = 0, 0x80000, 0x100000, 0x100800, 0x108000, 0x110000, 0x200000, 0x300000, 0x400000
WS_PL = 0x180000
WS_BYTES = 285229056
OH = 560
OW, QW = 4 * OH, 8 * OH
L_QP = 0x0
L_OA, L_OB = 0x0, 4 * OW
L_M, L_F, L_Q, L_O, L_W = 0x4800, 0x4880, 0x4900, 0x5200, 0x5B00
WCS = 80
WK = 64 * WCS
LDS_BYTES = L_W + 8 * WK
S_WAVE, S_T2, S_BR, S_XQ, S_BH, S_KVH, S_S, S_B, S_HEAD, S_SOFF, S_T = 3, 4, 5, 6, 7, 9, 11, 12, 13, 14, 15
S_SELLO, S_SELHI, S_TAG, S_INS, S_C, S_CNT = 16, 17, 18, 22, 26, 27
S_C4000, S_C8000, S_CC000, S_C80000 = 28, 29, 30, 31
SRD_KB, SRD_KA, SRD_VA, SRD_VB, SRD_WQ, SRD_X, SRD_WO, SRD_WS, SRD_OUT = 32, 36, 40, 44, 48, 52, 56, 60, 64
S_MASK, S_PC, S_STAMP, S_E8, S_RB, S_RA, S_FOR = 68, 70, 72, 94, 95, 100, 101
S_P2S = 70
V_K, V_V, V_TAG = 1, 2, 3
QA, QB, DT, SA, SB, OACC, RING, VT = 16, 24, 32, 48, 64, 96, 128, 16
LA, LB = 56, 60
def srd(n): return f"s[{n}:{n+3}]"
def vr(n, k=4): return f"v[{n}:{n+k-1}]"
def ar(n, k=4): return f"a[{n}:{n+k-1}]"
MFMA = "v_mfma_f32_16x16x32_bf16"

class Sched:
    def __init__(self, out, F, CAP, wstore):
        self.out, self.F, self.CAP, self.wstore = out, F, CAP, wstore
        self.ops = []; self.landed = 0; self.seq = {}; self.marks = set(); self.comp = []; self.loads = []
    def c(self, lines, need=(), mark=None, stores=0, bias=0):
        if isinstance(lines, str): lines = [lines]
        if isinstance(need, str): need = (need,)
        self.comp.append((lines, tuple(need), mark, stores, bias))
    def ld(self, text, name=None, pre=(), after=None, F=None, w=1.0, Ft=None, nops=1, need=None):
        self.loads.append((text, name, tuple(pre), after, F, w, Ft, nops, need))
    def wait_landed(self, n):
        if n > self.landed:
            k = len(self.ops) - n
            self.out.append(f"s_waitcnt vmcnt({min(k, 63)})")
            self.landed = max(n, len(self.ops) - min(k, 63))
    def target(self, F, w):
        n = max(self.landed, len(self.ops) - 62)
        if w <= 0: return n
        while sum(self.ops[n:]) + w > F + 1e-9: n += 1
        return n
    def ready(self, item): return all(nm in self.seq and self.seq[nm] <= self.landed for nm in item[1])
    def emit_comp(self):
        lines, need, mark, stores, bias = self.comp.pop(0)
        for nm in need:
            assert nm in self.seq, f"compute needs load {nm} not issued yet"
            self.wait_landed(self.seq[nm])
        self.out.extend(lines)
        self.ops += [self.wstore] * stores
        if bias: self.ops[-1] += bias
        if mark: self.marks.add(mark)
        return len(lines)
    def run(self):
        for idx, (text, name, pre, after, F, w, Ft, nops, need) in enumerate(self.loads):
            while after and after not in self.marks: self.emit_comp()
            self.out.extend(pre)
            self.wait_landed(self.target(self.F if F is None else F, w))
            if Ft is not None:
                nt = self.target(Ft, w)
                if nt > self.landed: self.out.extend([f"s_cbranch_vccnz L_loose{idx}", f"s_waitcnt vmcnt({len(self.ops) - nt}) ; opt", f"L_loose{idx}:"])
            if need: self.wait_landed(self.seq[need])
            self.out.extend(text.split('\n'))
            self.ops += ([w] + [0] * (nops - 1)) if nops else []
            if name: self.seq[name] = len(self.ops)
            n = 0
            while self.comp and n < self.CAP and self.ready(self.comp[0]):
                if idx + 1 < len(self.loads):
                    nx = self.loads[idx + 1]
                    if self.target(nx[6] or (self.F if nx[4] is None else nx[4]), nx[5]) <= self.landed and (not nx[3] or nx[3] in self.marks):
                        break
                n += self.emit_comp()
        self.loads = []
        while self.comp: self.emit_comp()

def check_ops(regs, tmp):
    o = []; acc = []; t = tmp
    assert len(regs) % 2 == 0
    for a, b in zip(regs[0::2], regs[1::2]):
        for k in range(4):
            o.append(f"v_bitop3_b32 v{t}, v{a+k}, v{b+k}, s{S_TAG+k} bitop3:0x7e"); acc.append(t); t += 1
            if len(acc) == 3:
                o.append(f"v_or3_b32 v{acc[0]}, v{acc[0]}, v{acc[1]}, v{acc[2]}"); acc = [acc[0]]; t = acc[0] + 1
    if len(acc) == 2: o.append(f"v_or_b32 v{acc[0]}, v{acc[0]}, v{acc[1]}")
    o.append(f"v_and_b32 v{acc[0]}, 0xff, v{acc[0]}")
    o.append(f"v_cmp_ne_u32 vcc, 0, v{acc[0]}")
    return o
def sum4(dst, src):
    o = []
    for i in (0, 2): o.append(f"v_pk_add_f32 {vr(dst+i,2)}, {vr(src+i,2)}, {vr(src+4+i,2)}")
    for i in (0, 2): o.append(f"v_pk_add_f32 {vr(dst+4+i,2)}, {vr(src+8+i,2)}, {vr(src+12+i,2)}")
    for i in (0, 2): o.append(f"v_pk_add_f32 {vr(dst+i,2)}, {vr(dst+i,2)}, {vr(dst+4+i,2)}")
    return o
def tag4(dst, src): return [f"v_perm_b32 v{dst+i}, v{src+i}, v{V_TAG}, s{S_INS+i}" for i in range(4)]
S_UNT = 93
def untag(dst, src, n=16): return [f"v_and_b32 v{dst+i}, s{S_UNT}, v{src+i}" for i in range(n)]
def flav(loads, f): return [(l[:-4] + " " + f).rstrip() for l in loads]

PATS = {
    81: ([13, 9], [8, 11], [14, 15], [10, 12, 16, 17, 18, 19], [3088, 3600, 1296, 2816, 3088, 0]),
    57: ([13, 14], [16, 11], [15, 9], [12, 8, 10, 17, 18, 19], [1029, 517, 5, 3077, 3077, 1541]),
    110: ([13, 11], [8, 17], [15, 16], [9, 12, 19, 18, 10, 14], [68, 4, 3140, 1108, 3072, 3136]),
}

def gen(F=6, CAP=24, stamps=False, pol="nt", wpol="nt", wstore=0, wq_every=4, wo_at=54, qpoll_at=66, mlpoll_at=34, mlt=3, warm_at=72,
        depth1=2, depth2=3, pat=110, scramble=False, fast=True, probe=True, prb_at=14, prb_n=8, prb_span=7, fb=(0, 6, 8, 26, 9), sb=(4, 6),
        a_bias=0, mlb_at=56, mltb=6, a_store='s8', stage2=False, prb2=3, prb_skip=2, prb_flip=0, sl1=0, sl2=0, clean=None, bo2=0, w0=True, warm_b=True, defer='s6', preread=None, wq0=8, tight=True, k0=0, Fst=None, wo_gap=4, ka_first=False):
    O = []; A = O.append
    tail_code = []; T = tail_code.extend
    nst = [0]
    def stamp():
        if not stamps: return []
        i = nst[0]; nst[0] += 1
        return [f"s_memrealtime s[{S_STAMP+2*i}:{S_STAMP+2*i+1}]"]
    def giveup(nm): return [f"s_cmp_eq_u32 s{S_CNT}, 0", f"s_cbranch_scc1 L_ok_{nm}", f"s_sub_u32 s{S_CNT}, s{S_CNT}, 1"]
    def slow_retry(nm, loads): T([f"L_retry_{nm}:"] + giveup(nm) + ["s_sleep 4"] + loads + ["s_waitcnt vmcnt(0)", f"s_branch L_chk_{nm}"])
    PL, PW, PG, PS, PR = PATS[pat]
    PSA = [x for x in PS if x < 18]
    def sc(val, pos): return sum(((val >> i) & 1) << p for i, p in enumerate(pos))

    A(f"{NAME}_kernel:")
    O.extend(stamp())
    if scramble: A("s_lshr_b32 s4, s2, 4"); A(f"s_and_b32 s4, s4, {scramble}"); A("s_xor_b32 s2, s2, s4")
    kb = [f"s_load_dwordx2 s[{SRD_KB}:{SRD_KB+1}], s[0:1], 48", "s_cmpk_ge_u32 s2, 256", "s_cbranch_scc1 L_end"]
    if wq0:
        A("s_bitcmp1_b32 s2, 7"); A("s_cselect_b32 s10, 64, 24")
        A(f"s_load_dwordx2 s[{SRD_WQ}:{SRD_WQ+1}], s[0:1], s10")
        if not tight: O.extend(kb)
        A("v_and_b32 v5, 15, v0"); A("v_sub_u32 v8, v0, v5"); A("v_lshlrev_b32 v8, 12, v8"); A("v_lshl_or_b32 v8, v5, 4, v8")
        A(f"s_and_b32 s{S_KVH}, s2, 7"); A("s_bfe_u32 s8, s2, 0x20005"); A(f"s_lshl2_add_u32 s{S_HEAD}, s{S_KVH}, s8"); A("s_and_b32 s8, s2, 24")
        A("s_lshl_b32 s8, s8, 9"); A(f"s_or_b32 s8, s8, s{S_HEAD}"); A(f"s_mov_b32 s{SRD_WQ+2}, 0x400000"); A(f"s_mov_b32 s{SRD_WQ+3}, 0x20000")
        A("v_lshl_add_u32 v8, s8, 8, v8"); A(f"s_movk_i32 s{S_T2}, 0x2000"); A("s_waitcnt lgkmcnt(0)")
        for t in range(wq0):
            if t > 1: A(f"s_addk_i32 s{S_T2}, 0x2000")
            A(f"buffer_load_dwordx4 {vr(128+4*t)}, v8, {srd(SRD_WQ)}, {f's{S_T2}' if t else '0'} offen {wpol}")
        if tight: O.extend(kb)
    else: O.extend(kb)
    A(f"v_readfirstlane_b32 s{S_WAVE}, v0"); A("v_and_b32 v0, 63, v0")
    A("v_lshrrev_b32 v6, 4, v0"); A("v_and_b32 v7, 1, v0"); A("v_lshlrev_b32 v5, 4, v7"); A("v_lshl_or_b32 v5, v6, 5, v5")
    for bit, pos in ((1, PS[0]), (2, PL[0]), (3, PL[1])):
        A(f"v_bfe_u32 v7, v0, {bit}, 1"); A(f"v_lshl_or_b32 v5, v7, {pos}, v5")
    A(f"s_lshr_b32 s{S_WAVE}, s{S_WAVE}, 6")
    A(f"s_lshr_b32 s{S_B}, s2, 5"); A(f"s_and_b32 s{S_KVH}, s2, 7"); A(f"s_lshl3_add_u32 s8, s{S_B}, s{S_KVH}"); A("s_lshl_b32 s8, s8, 20")
    A(f"s_bfe_u32 s{S_S}, s2, 0x20003")
    for src, pos in ((S_S, PG), (S_WAVE, PW)):
        if pos[1] == pos[0] + 1:
            A(f"s_lshl_b32 s10, s{src}, {pos[0]}")
        else:
            assert abs(pos[0] - pos[1] + 1) > 1
            A(f"s_mul_i32 s10, s{src}, {(1 << pos[0]) | (1 << (pos[1] - 1))}"); A(f"s_and_b32 s10, s10, {(1 << pos[0]) | (1 << pos[1])}")
        A("s_or_b32 s8, s8, s10")
    first = True
    for i, r in enumerate(PR):
        if r:
            A(f"s_bitcmp1_b32 s2, {i if i < 3 else i + 2}")
            if first: A(f"s_cselect_b32 s{S_RB}, {r << 8}, 0"); first = False
            else: A(f"s_cselect_b32 s10, {r << 8}, 0"); A(f"s_xor_b32 s{S_RB}, s{S_RB}, s10")
    A(f"s_mov_b32 s{SRD_KB+2}, 0x4000000"); A(f"s_mov_b32 s{SRD_KB+3}, 0x20000")
    A(f"v_add_u32 v{V_K}, s8, v5")
    if tight or not wq0: A("s_waitcnt lgkmcnt(0)")

    S = Sched(O, F, CAP, wstore); c = S.c
    for t in range(wq0):
        S.ops.append(1.0); S.seq[f"WQ{t}"] = len(S.ops)
    rmask = 0
    for r in PR: rmask |= r << 8
    cur = [None]
    def addr(br, idx, extra):
        off = sc(idx, PS if br else PSA)
        imm = off & 0xfff & ~rmask
        hi = off ^ imm
        base = S_RB if br else S_RA
        if hi == 0: return [], f"s{base}", imm + extra
        pre = [] if cur[0] == (br, hi) else [f"s_xor_b32 s{S_SOFF}, s{base}, {hi}"]
        cur[0] = (br, hi)
        return pre, f"s{S_SOFF}", imm + extra
    kl = []
    for br, nT in ((1, 8), (0, 2)):
        for Tn in range(nT):
            for i in range(8):
                pre, so, imm = addr(br, 8 * Tn + (i & ~1), (i & 1) * 128)
                dst = ar(32 * Tn + 4 * i) if br else vr(RING + 64 + 32 * Tn + 4 * i)
                kl.append(dict(text=f"buffer_load_dwordx4 {dst}, v{V_K}, {srd(SRD_KB if br else SRD_KA)}, {so} offen offset:{imm} {pol}",
                               name=f"K{'B' if br else 'A'}{Tn}_{i}", pre=pre))
    WQD, XD, WQT, QD = 128, 48, 64, 96
    V_WQ, V_X, V_QP, V_WO = 8, 9, 11, 15
    QP = 128
    side0 = dict(text="\n".join([f"global_load_dword v52, v10, s[{S_PC}:{S_PC+1}]", f"buffer_load_dwordx4 {vr(XD)}, v{V_X}, {srd(SRD_X)}, 0 offen",
                                 f"s_cmp_lg_u32 s{S_WAVE}, 3", "s_cbranch_scc1 L_notouch", "s_mov_b64 exec, 1",
                                 f"buffer_load_dword v53, v{V_V}, {srd(SRD_VB)}, 0 offen {pol}", f"buffer_load_dword v54, v{V_V}, {srd(SRD_VA)}, s{S_RA} offen {pol}",
                                 f"buffer_load_dword v55, v{V_V}, {srd(SRD_KA)}, s{S_RA} offen {pol}", "s_mov_b64 exec, -1", "L_notouch:"]), w=0, nops=2, name="X", after="setup")
    wql = [dict(text=f"buffer_load_dwordx4 {vr(WQD+4*t)}, v{V_WQ}, {srd(SRD_WQ)}, s{S_T2} offen {wpol}", name=f"WQ{t}", pre=[f"s_mov_b32 s{S_T2}, {t*8192}"]) for t in range(8)]
    WOD, WOL = RING + 32, RING + 96
    def wo_ld(i, dst, sr, nm, after):
        return dict(text=f"buffer_load_dwordx4 {vr(dst+4*i)}, v{V_WO}, {srd(sr)}, s{S_T2} offen {wpol}", name=nm, pre=[f"s_mov_b32 s{S_T2}, {8*i*1024}"], after=after)
    wol = [wo_ld(i, WOD, SRD_WO, f"WO{i}", "wo_addr") for i in range(4)]
    wol_late = [wo_ld(i, WOL, SRD_WQ, f"WL{i}", "perm7_3") for i in range(4)]
    def qpoll_(so): return [f"buffer_load_dwordx4 {vr(QP+4*k)}, v{V_QP}, {srd(SRD_WS)}, {so} offen offset:{512*k} sc1" for k in range(4)]
    qpoll = qpoll_(f"s{S_XQ}")
    ki = max(F - wq0, k0)
    for d in kl[:ki]: d["F"] = 60
    if Fst:
        for d in kl[ki:ki + Fst[0]]: d["F"] = Fst[1]
    stream = kl[:ki] + [side0]
    if wq0: stream += kl[ki:ki + 2 * wq_every]; ki += 2 * wq_every
    for i in range(wq0, 8, 2):
        stream += wql[i:i+2] + kl[ki:ki + 2 * wq_every]; ki += 2 * wq_every
    assert ki <= wo_at
    stream += kl[ki:wo_at]; ki = wo_at
    for i in range(0, 4, 2):
        stream += wol[i:i+2] + kl[ki:ki + wo_gap]; ki += wo_gap
    assert ki <= qpoll_at
    stream += kl[ki:qpoll_at] + [dict(text=t, name=f"QP{i}", after="qproj_done", w=0) for i, t in enumerate(flav(qpoll, ""))] + kl[qpoll_at:]
    if probe:
        k = 0
        for d in stream:
            if d.get("w", 1) != 1: continue
            t, ph = divmod(k - prb_at, prb_span); k += 1
            if t < 0 or t > prb_n or (t == prb_n and ph): continue
            post = []
            if t == prb_n:
                post = ["s_cmp_eq_u32 s99, 0", "s_cbranch_scc1 L_decide", "L_decided:"]
                T(["L_decide:", "s_cmp_gt_i32 s98, 0", "s_cselect_b32 vcc_lo, 0x100, 0" if prb_flip else "s_cselect_b32 vcc_lo, 0, 0x100", "s_getreg_b32 vcc_hi, hwreg(HW_REG_XCC_ID, 0, 3)", "s_lshl_b32 vcc_hi, vcc_hi, 12",
                   "s_or_b32 vcc_lo, vcc_lo, vcc_hi", "v_mov_b32 v56, vcc_lo"] + [f"v_perm_b32 v{56+i}, v56, v{V_TAG}, s{S_INS+i}" for i in (3, 2, 1, 0)]
                  + [f"v_mov_b32 v60, {WS_DEC}", "s_mov_b64 exec, 1", f"buffer_store_dwordx4 {vr(56)}, v60, {srd(SRD_WS)}, 0 offen sc1", "s_mov_b64 exec, -1", "s_branch L_decided"])
            elif ph == 0:
                if t == 0: d["after"] = "tag"
                post = ["s_waitcnt lgkmcnt(0)", f"s_mov_b32 s96, s{S_TAG}", f"s_mov_b32 s97, s{S_TAG}", "s_cmp_lg_u32 s99, 0", f"s_cbranch_scc1 L_np{t}"]
                for g, x in [(0, 0)] + [(1, x) for x in range(prb2 - 1, -1, -1)]:
                    post.append(f"s_load_dword s{S_BH if x else 96+g}, s[{SRD_WS}:{SRD_WS+1}], {WS_PRB + (t % 10) * 0xc300 + (t // 10) * 0x80 + x * 0x4400 + (((t & 1) ^ g ^ prb_flip) << 13)}")
                post.append(f"L_np{t}:")
            elif ph >= prb_skip:
                post = ["s_mov_b64 vcc, s[96:97]", f"s_cmp_eq_u32 vcc_hi, s{S_TAG}", f"s_cselect_b32 vcc_lo, vcc_lo, s{S_TAG}", f"s_cmp_lg_u32 vcc_lo, s{S_TAG}",
                        "s_subb_u32 s98, s98, 0" if t & 1 else "s_addc_u32 s98, s98, 0"]
            if post: d["text"] += "\n" + "\n".join(post)
    vl = []
    for n in range(10):
        for t in range(8):
            br, Tn = (0, n) if n < 2 else (1, n - 2)
            pre, so, imm = addr(br, 8 * Tn + t, 0)
            after = {0: "q_summed", 1: "wo_done", 2: "qkA0", 3: "qkA1"}.get(n, f"perm{n-4}_{t//2}")
            vl.append(dict(text=f"buffer_load_dwordx4 {vr(RING+32*(n%4)+4*t)}, v{V_V}, {srd(SRD_VB if br else SRD_VA)}, {so} offen offset:{imm} {pol}", name=f"V{n}_{t}", pre=pre, after=after))
    MLR, DECR, O1R, P2R, RR = 48, 64, 64, 128, 144
    AW, AO, AP = 32, 64, 80
    V_ML, V_O1C, V_P2L, V_OUT = 12, 13, 8, 9
    def ml_(br): return [f"buffer_load_dwordx4 {vr(MLR+4*s)}, v{V_ML}, {srd(SRD_WS)}, {f's{S_C4000}' if br else '0'} offen offset:{16*s} sc1" for s in range(4)]
    decpoll = [f"s_mov_b32 s{S_T2}, {WS_DEC}", f"buffer_load_dwordx4 {vr(DECR)}, off, {srd(SRD_WS)}, s{S_T2} sc1"] if probe else []
    def o1_(br, reg): return [f"buffer_load_dwordx4 {reg(4*s)}, v{V_O1C}, {srd(SRD_WS)}, {f's{S_C80000}' if br else '0'} offen offset:{512*s} sc1" for s in range(4)]
    def p2_(reg): return [f"buffer_load_dwordx4 {reg(4*i)}, v{V_P2L}, {srd(SRD_WS)}, {so} offen sc1" for i, so in enumerate(("0", f"s{S_C4000}", f"s{S_C8000}", f"s{S_CC000}"))]
    mla = [dict(text="\n".join(flav(o1_(0, lambda o: ar(AO + o)), "") + flav(ml_(0), "")), w=0, nops=8, name="MLA", after="pubA")]
    PLR, V_PL = 68, 72
    assert probe
    plpoll = [f"buffer_load_dwordx4 {vr(PLR)}, v{V_PL}, {srd(SRD_WS)}, 0 offen sc1"]
    if not stage2: plpoll = []
    mlb = [dict(text="\n".join(decpoll + flav(plpoll + ml_(1), "")), w=0, nops=5 + len(plpoll), name="MLB", after="pl_addr" if stage2 else "atail")]
    warm = [dict(text="\n".join([f"s_cmp_lg_u32 s{S_WAVE}, 0", "s_cbranch_scc1 L_nowarm", f"buffer_load_ushort a1, v{V_OUT}, {srd(SRD_OUT)}, 0 offen",
                                 f"s_cmp_eq_u32 s{S_BR}, 0", "s_cbranch_scc1 L_nowarm"] + (p2_(lambda o: ar(AP + o)) if warm_b else []) + ["L_nowarm:"]), w=0, nops=0, after="tail_setup")]
    if preread:
        d = mlb[0] if preread == "mlb" else warm[0]
        d["text"] = "\n".join(["s_mov_b32 exec_hi, 0", "s_mov_b32 exec_lo, 0x01010101", f"buffer_load_dword a2, v7, {srd(SRD_WS)}, s{S_C80000} offen", "s_mov_b64 exec, -1", d["text"]])
        d["nops"] += 1
    vs = vl[:mlpoll_at] + mla + vl[mlpoll_at:mlb_at] + mlb + vl[mlb_at:warm_at] + warm + vl[warm_at:] + wol_late
    if fb:
        f0, Ft_, Fl_, thr, every = fb
        nv = sum(1 for d in vs if d.get("w", 1) == 1)
        out = []; k = 0; pend = None
        for d in vs:
            out.append(d)
            if d.get("w", 1) != 1: continue
            if k > f0 + Fl_: d["F"], d["Ft"] = Fl_, Ft_
            if pend is not None and k == pend + Fl_:
                d["need"] = f"PG{pend}"
                d["text"] += "\n" + "\n".join([f"v_cmp_le_u32 vcc, {pend + 1}, v{V_K}", "s_bcnt1_i32_b32 vcc_hi, vcc_lo", "s_cmp_ge_u32 vcc_hi, s99", "s_cselect_b64 vcc, -1, 0"])
                pend = None
            if k >= f0 and (k - f0) % every == 0 and k + Fl_ + 2 < nv:
                out.append(dict(text="\n".join([f"v_mov_b32 v{V_K}, {k + 1}", "s_mov_b64 exec, 1", f"buffer_store_byte v{V_K}, off, {srd(SRD_WS)}, s97", "s_mov_b64 exec, -1",
                                                f"buffer_load_ubyte v{V_K}, v0, {srd(SRD_WS)}, s96 offen nt"]), w=0, nops=2, name=f"PG{k}", after="pg_addr"))
                pend = k
            k += 1
        vs = out
    for d in stream + vs: S.ld(**d)

    c([f"s_lshr_b32 s{S_BR}, s2, 7", f"s_mul_i32 s10, s{S_BR}, 40", f"s_load_dwordx2 s[{SRD_WS}:{SRD_WS+1}], s[0:1], 96",
       f"s_load_dwordx2 s[{SRD_X}:{SRD_X+1}], s[0:1], s10"] + ([] if wq0 else [f"s_load_dwordx2 s[{SRD_WQ}:{SRD_WQ+1}], s[0:1], s10 offset:24"]) + [ f"s_load_dwordx2 s[{SRD_WO}:{SRD_WO+1}], s[0:1], 32",
       f"s_load_dwordx2 s[{SRD_KA}:{SRD_KA+1}], s[0:1], 8", f"s_load_dwordx2 s[{SRD_VA}:{SRD_VA+1}], s[0:1], 16", f"s_load_dwordx2 s[{SRD_VB}:{SRD_VB+1}], s[0:1], 56",
       f"s_load_dwordx2 s[{SRD_OUT}:{SRD_OUT+1}], s[0:1], 80"])
    c("v_and_b32 v5, 15, v0"); c(f"v_lshl_add_u32 v{V_V}, v5, 4, s8")
    for bit, pos in ((4, PL[0]), (5, PL[1])):
        c(f"v_bfe_u32 v7, v0, {bit}, 1"); c(f"v_lshl_or_b32 v{V_V}, v7, {pos}, v{V_V}")
    c(f"s_or_b32 s{S_RA}, s{S_RB}, 0xC0000")
    for n, sz in ((SRD_WQ, 0x400000), (SRD_X, 8192), (SRD_KA, 0x4000000), (SRD_VA, 0x4000000), (SRD_VB, 0x4000000), (SRD_WO, 0x400000), (SRD_WS, WS_BYTES), (SRD_OUT, 16384)):
        c(f"s_mov_b32 s{n+2}, {sz}"); c(f"s_mov_b32 s{n+3}, 0x20000")
    c("s_bfe_u32 s8, s2, 0x20005"); c(f"s_lshl2_add_u32 s{S_HEAD}, s{S_KVH}, s8")
    c(f"s_lshl2_add_u32 s8, s{S_S}, s{S_WAVE}")
    if not wq0:
        c("s_lshl_b32 s10, s8, 18"); c(f"s_lshl_b32 s{S_T}, s{S_HEAD}, 8"); c(f"s_or_b32 s10, s10, s{S_T}")
        c(f"v_lshlrev_b32 v{V_WQ}, 16, v6"); c(f"v_lshl_or_b32 v{V_WQ}, v5, 4, v{V_WQ}"); c(f"v_add_u32 v{V_WQ}, s10, v{V_WQ}")
    c("s_lshl_b32 s8, s8, 6"); c("v_and_b32 v7, 7, v0")
    c(f"v_lshlrev_b32 v{V_X}, 10, v7"); c(f"v_lshl_or_b32 v{V_X}, v6, 4, v{V_X}"); c(f"v_add_u32 v{V_X}, s8, v{V_X}")
    c([f"s_getpc_b64 s[{S_PC}:{S_PC+1}]", "L_pc:"])
    c(f"s_lshl_b32 s8, s{S_WAVE}, 13"); c("v_lshl_add_u32 v10, v0, 7, s8"); c("v_min_u32 v10, L_code_end-L_pc-4, v10")
    c(["s_waitcnt lgkmcnt(0)", f"s_mov_b32 s8, {WS_E}", f"s_load_dword s{S_TAG}, s[{SRD_WS}:{SRD_WS+1}], s8"], mark="setup")
    c(f"s_lshl2_add_u32 s{S_E8}, s{S_BR}, s{S_S}")
    c(f"s_lshl_b32 s10, s{S_HEAD}, 17"); c(f"s_lshl_b32 s{S_T}, s{S_E8}, 7"); c(f"s_or_b32 s10, s10, s{S_T}"); c(f"s_lshl_b32 s{S_T}, s{S_WAVE}, 15"); c(f"s_or_b32 s10, s10, s{S_T}")
    c("v_lshrrev_b32 v16, 3, v0"); c(f"v_lshlrev_b32 v{V_WO}, 10, v16"); c(f"v_lshl_or_b32 v{V_WO}, v7, 4, v{V_WO}"); c(f"v_add_u32 v{V_WO}, s10, v{V_WO}", mark="wo_addr")
    c(f"s_mov_b32 s{S_SELLO}, 0x05040100"); c(f"s_mov_b32 s{S_SELHI}, 0x07060302")
    for k in range(4): c(f"s_mov_b32 s{S_INS+k}, {0x07060500 + k:#x}")
    c(f"s_mov_b32 s{S_C}, {f32((128 ** -0.5) * 1.4426950408889634):#x}"); c(f"s_mov_b32 s{S_CNT}, 0x3ffff"); c(f"s_mov_b32 s{S_UNT}, 0xffffff00")
    c(f"s_mov_b32 s{S_C4000}, 0x4000"); c(f"s_mov_b32 s{S_C8000}, 0x8000"); c(f"s_mov_b32 s{S_CC000}, 0xc000"); c(f"s_mov_b32 s{S_C80000}, 0x80000")
    c("v_lshrrev_b32 v4, 5, v0"); c("v_and_b32 v5, 31, v0"); c("v_lshlrev_b32 v5, 4, v5")
    c(f"v_mul_u32_u24 v12, {OH}, v7"); c("v_lshl_add_u32 v12, v6, 7, v12"); c(f"s_mul_i32 s8, s{S_WAVE}, {QW}"); c("v_add_u32 v12, s8, v12")
    c(f"v_mul_u32_u24 v14, {OH}, v4"); c("v_add_u32 v14, v14, v5"); c(f"s_mul_i32 s8, s{S_WAVE}, {2*OH}"); c("v_add_u32 v14, s8, v14")
    c(f"s_lshl_b32 s8, s{S_BR}, 19"); c(f"s_lshl_b32 s10, s{S_HEAD}, 11"); c("s_or_b32 s8, s8, s10"); c(f"s_lshl_b32 s10, s{S_S}, 9"); c("s_or_b32 s8, s8, s10"); c(f"s_add_u32 s8, s8, {WS_Q}")
    c("v_lshl_or_b32 v17, v4, 16, v5"); c("v_add_u32 v17, s8, v17"); c(f"s_lshl_b32 s10, s{S_WAVE}, 17"); c("v_add_u32 v13, s10, v17")
    c(f"s_getreg_b32 s{S_XQ}, hwreg(HW_REG_XCC_ID, 0, 4)"); c(f"s_lshl_b32 s{S_XQ}, s{S_XQ}, 20"); c(f"s_add_u32 s{S_XQ}, s{S_XQ}, {WS_QX - WS_Q}")
    c(f"s_mov_b32 s{S_FOR}, {0 if fast else 1}")
    c(f"s_lshl_b32 s8, s{S_B}, 16"); c(f"s_lshl_b32 s10, s{S_KVH}, 13"); c("s_or_b32 s8, s8, s10"); c(f"s_lshl_b32 s10, s{S_WAVE}, 11"); c("s_or_b32 s8, s8, s10"); c(f"s_add_u32 s8, s8, {WS_Q}")
    c(f"v_lshl_or_b32 v{V_QP}, v4, 19, v5"); c(f"v_add_u32 v{V_QP}, s8, v{V_QP}")
    c(["s_waitcnt lgkmcnt(0)", f"s_add_u32 s{S_TAG}, s{S_TAG}, 0x9E3779B1"], need="X")
    for k in range(1, 4): c(f"s_lshr_b32 s{S_TAG+k}, s{S_TAG}, {8*k}")
    c(f"s_or_b32 s99, s2, s{S_WAVE}"); c("s_mov_b32 s98, 0")
    c(f"v_mov_b32 v{V_TAG}, s{S_TAG}", mark="tag")
    def transpose(dst, src, nm, mk=None):
        for p in range(4):
            for e in range(8):
                c(f"v_perm_b32 v{dst+4*e+p}, v{src+4*(2*p+1)+e//2}, v{src+4*(2*p)+e//2}, s{S_SELHI if e & 1 else S_SELLO}", need=f"{nm}{2*p+1}", mark=(f"{mk}{p}" if (mk and e == 7) else None))
    transpose(WQT, WQD, "WQ")
    for e in range(8): c(f"{MFMA} {vr(QD+4*e)}, {vr(WQT+4*e)}, {vr(XD)}, 0")
    blk = ["s_mov_b32 exec_lo, 0x00ff00ff", "s_mov_b32 exec_hi, 0x00ff00ff"] + [f"ds_write_b128 v12, {vr(QD+4*e)} offset:{L_QP+16*e}" for e in range(8)]
    blk += ["s_mov_b64 exec, -1", "s_waitcnt lgkmcnt(0)", "s_barrier"] + [f"ds_read_b128 {vr(64+4*w)}, v14 offset:{L_QP+QW*w}" for w in range(4)]
    c(blk)
    def pg_addr(line, own):
        return [f"s_lshl2_add_u32 s{line}, s{S_KVH}, s{S_WAVE}", f"s_lshl_b32 s{line}, s{line}, 8", f"s_add_u32 s{line}, s{line}, {WS_PG}", f"s_lshr_b32 s{own}, s2, 3", f"s_add_u32 s{own}, s{own}, s{line}"]
    if fb: c(pg_addr(8, 10) + ["v_mov_b32 v92, 0", "s_mov_b64 exec, 1", f"buffer_store_byte v92, off, {srd(SRD_WS)}, s10", "s_mov_b64 exec, -1"], stores=1, bias=-wstore)
    c(["s_waitcnt lgkmcnt(0)"] + sum4(80, 64) + tag4(88, 80))
    c([f"buffer_store_dwordx4 {vr(88)}, v13, {srd(SRD_WS)}, s{S_XQ} offen"] + stamp(), mark="qproj_done", stores=1)
    c(f"s_load_dwordx2 s[{SRD_WQ}:{SRD_WQ+1}], s[0:1], 72")
    c(f"s_lshl2_add_u32 s10, s{S_HEAD}, s{S_WAVE}"); c("s_lshl_b32 s10, s10, 1"); c("v_add_u32 v7, s10, v4")
    c(f"v_lshlrev_b32 v{V_ML}, 6, v7"); c(f"v_add_u32 v{V_ML}, {WS_ML}, v{V_ML}")
    c(f"v_lshl_or_b32 v{V_O1C}, v7, 11, v5"); c(f"v_add_u32 v{V_O1C}, {WS_O1}, v{V_O1C}")
    c("v_bfe_u32 v7, v0, 3, 2"); c("v_lshlrev_b32 v10, 10, v4"); c("v_lshl_or_b32 v10, v7, 6, v10"); c("v_and_b32 v7, 7, v0"); c("v_lshl_or_b32 v10, v7, 1, v10")
    c(f"s_lshl_b32 s8, s{S_WAVE}, 8"); c("v_add_u32 v10, s8, v10")
    c(f"s_lshl3_add_u32 s10, s{S_HEAD}, s{S_E8}"); c(f"s_lshl2_add_u32 s10, s10, s{S_WAVE}"); c(f"s_lshl_b32 s{S_P2S}, s10, 9"); c(f"s_add_u32 s{S_P2S+1}, s{S_P2S}, 0x80000")
    if stage2: c(f"s_add_u32 s{S_P2S}, s{S_P2S}, {WS_PL}")
    assert WS_P2 == 0
    c(f"s_lshl2_add_u32 s{S_T}, s{S_HEAD}, s{S_S}")
    c(f"s_lshl_b32 s10, s{S_T}, 7"); c(f"s_lshl_b32 s8, s{S_BR}, 19"); c("s_or_b32 s10, s10, s8")
    c(f"v_lshlrev_b32 v{V_P2L}, 16, v16"); c(f"v_lshl_or_b32 v{V_P2L}, v7, 4, v{V_P2L}"); c(f"v_add_u32 v{V_P2L}, s10, v{V_P2L}")
    c(f"s_lshr_b32 s10, s{S_T}, 4"); c("s_lshl_b32 s10, s10, 7"); c(f"s_and_b32 s8, s{S_T}, 1"); c("s_lshl1_add_u32 s10, s8, s10")
    c(f"s_and_b32 s8, s{S_T}, 12"); c("s_or_b32 s10, s10, s8"); c(f"s_lshl_b32 s8, s{S_BR}, 10"); c("s_or_b32 s10, s10, s8")
    c(f"s_bfe_u32 s8, s{S_T}, 0x10001"); c("s_lshl_b32 s8, s8, 13"); c("s_or_b32 s10, s10, s8")
    c(f"v_lshlrev_b32 v{V_OUT}, 11, v6"); c(f"v_lshl_or_b32 v{V_OUT}, v7, 4, v{V_OUT}"); c(f"v_add_u32 v{V_OUT}, s10, v{V_OUT}")
    c(f"v_mul_u32_u24 v14, {WCS}, v7"); c("v_lshl_add_u32 v14, v16, 3, v14"); c(f"s_mul_i32 s8, s{S_WAVE}, {WK}"); c("v_add_u32 v14, s8, v14")
    c("v_and_b32 v7, 3, v0"); c("v_lshlrev_b32 v7, 8, v7"); c("v_lshl_or_b32 v7, v6, 5, v7"); c("v_bfe_u32 v5, v0, 2, 1"); c("v_lshl_or_b32 v7, v5, 4, v7")
    def wo_put(br, src, tmp):
        o = []
        for e in range(8):
            for p in range(2): o.append(f"v_perm_b32 v{tmp+2*e+p}, v{src+4*(2*p+1)+e//2}, v{src+4*(2*p)+e//2}, s{S_SELHI if e & 1 else S_SELLO}")
            o.append(f"ds_write_b64 v14, {vr(tmp+2*e, 2)} offset:{L_W+4*WK*br+8*WCS*e}")
        return o
    for l in wo_put(0, WOD, 96): c(l, need="WO3")
    c([], mark="wo_done")
    qchk = check_ops([QP + 4 * i for i in range(4)], DT)
    c(["L_chk_q:"] + qchk + ["s_cbranch_vccnz L_retry_q", "L_ok_q:"] + stamp(), need="QP3")
    T(["L_retry_q:"] + giveup("q") + ["s_sleep 4", f"s_and_b32 s8, s{S_CNT}, 3", "s_cbranch_scc0 L_q_far", "L_q_near:"] + qpoll + ["s_waitcnt vmcnt(0)", "s_branch L_chk_q", "L_q_far:"])
    for w in range(4): T([f"s_add_u32 s8, s{S_XQ}, {w << 17}", f"buffer_load_dwordx4 {vr(64+4*w)}, v17, {srd(SRD_WS)}, s8 offen sc1"])
    T(["s_waitcnt vmcnt(0)"] + check_ops([64, 68, 72, 76], DT) + ["s_cbranch_vccnz L_q_near"])
    for w in range(4): T([f"s_mov_b32 s8, {w << 17}", f"buffer_store_dwordx4 {vr(64+4*w)}, v17, {srd(SRD_WS)}, s8 offen sc1"])
    T(qpoll_("0") + ["s_waitcnt vmcnt(0)"] + qchk + ["s_cbranch_vccnz L_q_near"] + qpoll + ["s_waitcnt vmcnt(0)"] + qchk
      + ["s_cbranch_vccz L_ok_q", f"s_mov_b32 s{S_FOR}, 1"] + qpoll_("0") + ["s_waitcnt vmcnt(0)", "s_branch L_ok_q"])
    for l in untag(QP, QP): c(l)
    c(sum4(DT, QP), mark="q_summed")
    c(f"v_cvt_pk_bf16_f32 v{DT+4}, v{DT}, v{DT+1}"); c(f"v_cvt_pk_bf16_f32 v{DT+5}, v{DT+2}, v{DT+3}")
    c(f"v_mov_b32 v{DT+6}, s{S_FOR}"); c(f"s_lshl_b32 s8, s{S_WAVE}, 2"); c(f"v_mov_b32 v{DT+7}, s8"); c(f"v_mov_b32 v{DT+12}, 0")
    blk = [f"ds_write_b16 v10, v{DT+4} offset:{L_Q}", f"ds_write_b16_d16_hi v10, v{DT+4} offset:{L_Q+16}", f"ds_write_b16 v10, v{DT+5} offset:{L_Q+32}",
           f"ds_write_b16_d16_hi v10, v{DT+5} offset:{L_Q+48}", f"ds_write_b32 v{DT+7}, v{DT+6} offset:{L_F}", "s_waitcnt lgkmcnt(0)", "s_barrier"]
    blk += [f"ds_read_b128 {vr(QA+8*br+4*L)}, v7 offset:{L_Q+1024*br+128*L}" for br in range(2) for L in range(2)] + [f"ds_read_b128 {vr(DT+8)}, v{DT+12} offset:{L_F}"]
    c(blk)
    c("s_waitcnt lgkmcnt(0)")
    c(f"v_or3_b32 v{DT+8}, v{DT+8}, v{DT+9}, v{DT+10}"); c(f"v_or_b32 v{DT+8}, v{DT+8}, v{DT+11}"); c(f"v_readfirstlane_b32 s{S_FOR}, v{DT+8}")
    if fb:
        blk = pg_addr(96, 97) + [f"s_mov_b32 s99, {fb[3] + (sb[0] + sb[1]) // 2}"]
        for bit, dl in ((0, sb[0]), (2, sb[1])):
            if dl: blk += [f"s_bitcmp1_b32 s2, {bit}", f"s_cselect_b32 s8, {dl}, 0", "s_sub_u32 s99, s99, s8"]
        c(blk + ["s_mov_b64 vcc, 0"], mark="pg_addr")
    def qk(br, Tn):
        q = QB if br else QA
        sb_ = (SB if br else SA) + 8 * Tn
        nm = f"K{'B' if br else 'A'}{Tn}_"
        for Tp in range(4):
            for L in range(2):
                i = 2 * Tp + L
                kreg = ar(32 * Tn + 4 * i) if br else vr(RING + 64 + 32 * Tn + 4 * i)
                c(f"{MFMA} {vr(DT+4*Tp)}, {kreg}, {vr(q+4*L)}, {'0' if L == 0 else vr(DT+4*Tp)}", need=nm + str(i), mark=(f"qkA{Tn}" if (not br and i == 7) else None))
        for Tp in range(4):
            for u in range(2):
                d = DT + 4 * Tp + 2 * u
                c(f"v_add_f32_dpp v{sb_+2*Tp+u}, v{d+1}, v{d} row_shl:4 row_mask:0xf bank_mask:0xf bound_ctrl:0")
        m = 5 if br else 4
        for i in range(4):
            c(f"v_max_f32 v{m}, v{sb_}, v{sb_+1}" if (Tn == 0 and i == 0) else f"v_max3_f32 v{m}, v{sb_+2*i}, v{sb_+2*i+1}, v{m}")
    for Tn in range(8): qk(1, Tn)
    for Tn in range(2): qk(0, Tn)
    for sw in ("v_permlane16_swap_b32", "v_permlane32_swap_b32"):
        c("v_mov_b32 v7, v4"); c("v_mov_b32 v10, v5"); c(f"{sw} v7, v4"); c(f"{sw} v10, v5"); c("v_max_f32 v4, v4, v7"); c("v_max_f32 v5, v5, v10")
    c("v_and_b32 v11, 3, v0"); c("v_lshlrev_b32 v11, 4, v11"); c(f"v_add_u32 v11, {L_M}, v11"); c(f"s_lshl_b32 s8, s{S_WAVE}, 2"); c("v_add_u32 v7, s8, v11")
    c(["s_mov_b64 exec, 15", "ds_write2_b32 v7, v4, v5 offset0:0 offset1:16", "s_mov_b64 exec, -1", "s_waitcnt lgkmcnt(0)", "s_barrier",
       f"ds_read_b128 {vr(DT)}, v11", f"ds_read_b128 {vr(DT+4)}, v11 offset:64"] + stamp())
    for i in range(4): c(f"v_mov_b32 v{DT+8+i}, 0x3f803f80")
    c("s_waitcnt lgkmcnt(0)")
    for br in range(2):
        d = DT + 4 * br; m = 4 + br
        c(f"v_max3_f32 v{m}, v{d}, v{d+1}, v{d+2}"); c(f"v_max_f32 v{m}, v{m}, v{d+3}"); c(f"v_mul_f32 v{m}, s{S_C}, v{m}")
    for br, nT in ((0, 2), (1, 8)):
        base = SB if br else SA
        for Tn in range(nT):
            sb_ = base + 8 * Tn
            for t in range(8): c(f"v_fma_f32 v{sb_+t}, v{sb_+t}, s{S_C}, -v{4+br}")
            for t in range(8): c(f"v_exp_f32 v{sb_+t}, v{sb_+t}")
            for p in range(4): c(f"v_cvt_pk_bf16_f32 v{base+4*Tn+p}, v{sb_+2*p}, v{sb_+2*p+1}")
        lreg = LB if br else LA
        for Tn in range(nT): c(f"{MFMA} {vr(lreg)}, {vr(DT+8)}, {vr(base+4*Tn)}, {'0' if Tn == 0 else vr(lreg)}")
    c("v_and_b32 v10, 3, v0"); c(f"v_mul_u32_u24 v10, {OH}, v10"); c("v_lshl_add_u32 v10, v6, 7, v10"); c(f"s_mul_i32 s8, s{S_WAVE}, {OW}"); c("v_add_u32 v10, s8, v10")
    c(f"s_mul_i32 s8, s{S_WAVE}, {OH}"); c("v_lshl_add_u32 v11, v0, 4, s8")
    c([f"s_cmp_eq_u32 s{S_WAVE}, 0", "s_cselect_b32 s8, 1.0, 0"])
    for br in range(2):
        lreg = LB if br else LA
        c(f"v_and_b32 v{lreg}, 0xffffff00, v{4+br}"); c(f"v_sub_f32 v{lreg+1}, v{4+br}, v{lreg}"); c(f"v_mul_f32 v{lreg}, s8, v{lreg}"); c(f"v_mul_f32 v{lreg+1}, s8, v{lreg+1}")
    c(["s_mov_b64 exec, 15", f"ds_write_b128 v10, {vr(LA)} offset:{L_OA+512}", f"ds_write_b128 v10, {vr(LB)} offset:{L_OA+528}", "s_mov_b64 exec, -1"])
    c(f"s_lshl2_add_u32 s8, s{S_KVH}, s{S_WAVE}"); c(f"s_lshl3_add_u32 s8, s8, s{S_B}"); c(f"s_lshl2_add_u32 s8, s8, s{S_S}")
    c("s_lshl_b32 s10, s8, 9"); c(f"s_add_u32 s10, s10, {WS_O1}"); c("v_lshl_add_u32 v7, v0, 4, s10")
    c("s_lshl_b32 s8, s8, 4"); c(f"s_add_u32 s8, s8, {WS_ML}"); c("v_and_b32 v4, 1, v0")
    c(["s_mov_b32 exec_lo, 0", "v_lshl_add_u32 v7, v4, 14, s8", "s_mov_b32 exec_lo, -1"])
    c([f"s_mov_b32 s{S_MASK}, 0x000f000f", f"s_mov_b32 s{S_MASK+1}, 0x000f000f"] + stamp())
    def pv(n):
        br, Tn = (0, n) if n < 2 else (1, n - 2)
        transpose(VT, RING + 32 * (n % 4), f"V{n}_", f"perm{n}_")
        for e in range(8): c(f"{MFMA} {vr(OACC+4*e)}, {vr(VT+4*e)}, {vr((SB if br else SA) + 4 * Tn)}, {'0' if Tn == 0 else vr(OACC+4*e)}")
    def combine(br):
        lo = L_OB if br else L_OA
        blk = [f"s_mov_b64 exec, s[{S_MASK}:{S_MASK+1}]"] + [f"ds_write_b128 v10, {vr(OACC+4*e)} offset:{lo+16*e}" for e in range(8)]
        blk += ["s_mov_b32 exec_lo, -1", f"s_mov_b32 exec_hi, {0 if br else 3}", f"s_cmp_lg_u32 s{S_FOR}, 0", "s_waitcnt lgkmcnt(0)", "s_barrier"]
        blk += [f"ds_read_b128 {vr(VT+4*w)}, v11 offset:{lo+OW*w}" for w in range(4)] + ["s_waitcnt lgkmcnt(0)"] + sum4(VT + 16, VT) + tag4(VT + 24, VT + 16)
        st = f"buffer_store_dwordx4 {vr(VT+24)}, v7, {srd(SRD_WS)}, {f's{S_C80000}' if br else '0'} offen"
        T([f"L_far_st{br}:", f"{st} sc1", f"s_branch L_st_done{br}"])
        return blk + [f"s_cbranch_scc1 L_far_st{br}", st, f"L_st_done{br}:", "s_mov_b64 exec, -1"]
    def outproj(br, src, t):
        o = [f"v_pk_mul_f32 {vr(t+16+i,2)}, {vr(src+i,2)}, {vr(MLR,2)} op_sel_hi:[1,0]" for i in (0, 2)]
        for s in range(1, 4): o += [f"v_pk_fma_f32 {vr(t+16+i,2)}, {vr(src+4*s+i,2)}, {vr(MLR+4*s,2)}, {vr(t+16+i,2)} op_sel_hi:[1,0,1]" for i in (0, 2)]
        o += [f"v_cvt_pk_bf16_f32 v{t+20}, v{t+16}, v{t+17}", f"v_cvt_pk_bf16_f32 v{t+21}, v{t+18}, v{t+19}", f"ds_write_b64 v4, {vr(t+20,2)}", "s_waitcnt lgkmcnt(0)", "s_barrier"]
        for kc in range(4): o += [f"ds_read_b128 {vr(t+4*kc)}, v5 offset:{L_O+64*kc}", f"ds_read_b128 {ar(AW+4*kc)}, v6 offset:{L_W+4*WK*br+WK*kc}"]
        for kc in range(4): o += [f"s_waitcnt lgkmcnt({0 if stamps else 6-2*kc})", f"{MFMA} {vr(t+16)}, {vr(t+4*kc)}, {ar(AW+4*kc)}, {'0' if kc == 0 else vr(t+16)}"]
        st = f"buffer_store_dwordx4 {vr(t+20)}, v{12 if br else t}, {srd(SRD_WS)}, s{S_P2S+br} offen"
        o += ([] if br else [f"v_lshlrev_b32 v{t}, 4, v0"]) + ["s_mov_b32 exec_hi, 0"]
        if br == 0 and defer: return o[:-2] + tag4(t + 20, t + 16) + [f"v_accvgpr_write_b32 a{96+i}, v{t+20+i}" for i in range(4)]
        if br or not stage2: return o + tag4(t + 20, t + 16) + [st + " sc1", "s_mov_b32 exec_hi, -1"]
        T(["L_far_pl:", st + " sc1", "s_branch L_pl_done"])
        return o + [f"s_cmp_lg_u32 s{S_FOR}, 0"] + tag4(t + 20, t + 16) + ["s_cbranch_scc1 L_far_pl", st, "L_pl_done:", "s_mov_b32 exec_hi, -1"]
    def weights(t):
        for s in range(4):
            for l in untag(MLR + 4 * s, MLR + 4 * s, 3): c(l)
            c(f"v_add_f32 v{MLR+4*s}, v{MLR+4*s}, v{MLR+4*s+1}")
        c(f"v_max3_f32 v{t}, v{MLR}, v{MLR+4}, v{MLR+8}"); c(f"v_max_f32 v{t}, v{t}, v{MLR+12}")
        for s in range(4): c(f"v_sub_f32 v{MLR+4*s}, v{MLR+4*s}, v{t}")
        for s in range(4): c(f"v_exp_f32 v{MLR+4*s}, v{MLR+4*s}")
        c(f"v_mul_f32 v{t}, v{MLR}, v{MLR+2}")
        for s in range(1, 4): c(f"v_fmac_f32 v{t}, v{MLR+4*s}, v{MLR+4*s+2}")
        c(f"v_rcp_f32 v{t}, v{t}")
        for s in range(4): c(f"v_mul_f32 v{MLR+4*s}, v{MLR+4*s}, v{t}")
    SV = ["s_mov_b32 s98, vcc_lo"]; RV = ["s_mov_b32 vcc_lo, s98", "s_mov_b32 vcc_hi, s98"]
    pv(0); pv(1)
    c(combine(0) + stamp(), stores=1, mark="pubA")
    c("v_lshrrev_b32 v4, 5, v0"); c("v_mul_u32_u24 v4, 272, v4"); c("v_and_b32 v5, 31, v0"); c("v_lshl_add_u32 v4, v5, 3, v4")
    c(f"s_mul_i32 s8, s{S_WAVE}, 544"); c(f"s_add_u32 s8, s8, {L_O}"); c("v_add_u32 v4, s8, v4")
    c("v_and_b32 v5, 7, v0"); c("v_mul_u32_u24 v5, 272, v5"); c("v_lshl_add_u32 v5, v6, 4, v5")
    c(f"s_mul_i32 s8, s{S_WAVE}, {16*WCS}"); c(["v_lshl_add_u32 v6, v6, 4, s8", f"v_and_b32 v{VT}, 15, v0", f"v_mul_u32_u24 v{VT}, {WCS}, v{VT}", f"v_add_u32 v6, v6, v{VT}"])
    for n in range(2, 10):
        pv(n)
        if n == mlt:
            for i in range(16): c(f"v_accvgpr_read_b32 v{VT+i}, a{AO+i}", need="MLA")
            c(SV + ["L_chk_a1:"] + check_ops([MLR + 4 * i for i in range(4)] + [VT + 4 * s for s in range(4)], VT + 16) + ["s_cbranch_vccnz L_retry_a1", "L_ok_a1:"] + RV)
            slow_retry("a1", ml_(0) + o1_(0, lambda o: vr(VT + o)))
            weights(VT + 16)
            for l in untag(VT, VT): c(l)
            if a_bias: c([], bias=-a_bias)
            c(outproj(0, VT, VT), stores=0 if defer else 1, mark="atail")
        if n == 4 and stage2:
            assert mlt <= 4
            c(f"s_and_b32 s8, s{S_HEAD}, 3"); c(f"s_lshl2_add_u32 s8, s{S_E8}, s8"); c(f"s_lshl2_add_u32 s8, s8, s{S_WAVE}"); c("s_lshl_b32 s8, s8, 7")
            c(f"s_lshl_b32 s10, s{S_KVH}, 16"); c(f"s_or_b32 s{S_P2S}, s8, s10"); c(f"s_add_u32 s8, s{S_P2S}, {WS_PL}")
            c(f"v_and_b32 v{V_PL+1}, 7, v0"); c(f"v_lshlrev_b32 v{V_PL+1}, 4, v{V_PL+1}"); c(f"v_bfe_u32 v{V_PL}, v0, 3, 2"); c(f"v_lshl_or_b32 v{V_PL}, v{V_PL}, 14, v{V_PL+1}")
            c(f"v_add_u32 v{V_PL}, s8, v{V_PL}", mark="pl_addr")
        if n == mltb:
            c(SV + ["L_chk_ml:"] + check_ops([MLR + 4 * i for i in range(4)] + [DECR, PLR if stage2 else DECR], VT) + ["s_cbranch_vccnz L_retry_ml", "L_ok_ml:"] + RV, need="MLB")
            slow_retry("ml", ml_(1) + decpoll + plpoll)
            if stage2:
                for i in range(4): c(f"v_add_f32_dpp v{VT+i}, v{PLR+i}, v{PLR+i} row_ror:8 row_mask:0xf bank_mask:0xf")
                for i in range(4): c(f"v_mov_b32 v{VT+4+i}, v{VT+i}")
                for i in range(4): c(f"v_permlane16_swap_b32 v{VT+4+i}, v{VT+i}")
                for i in (0, 2): c(f"v_pk_add_f32 {vr(VT+i,2)}, {vr(VT+i,2)}, {vr(VT+4+i,2)}")
                c(tag4(PLR, VT))
                for i in range(4): c(f"v_accvgpr_write_b32 a{96+i}, v{PLR+i}")
            c("v_lshlrev_b32 v12, 4, v0")
            if probe:
                c(f"v_readfirstlane_b32 s8, v{DECR}")
                c(["s_bfe_u32 s10, s8, 0x3000c", f"s_and_b32 s{S_T}, s2, 3", f"s_add_u32 s{S_T}, s{S_T}, s10", f"s_xor_b32 s10, s10, s{S_T}", "s_lshl_b32 s10, s10, 6",
                   "s_xor_b32 s8, s8, s10", "s_and_b32 s8, s8, 0x100", "s_lshl_b32 s10, s8, 5", f"v_xor_b32 v{V_P2L}, s10, v{V_P2L}", "s_lshl_b32 s10, s8, 1", f"v_xor_b32 v{V_OUT}, s10, v{V_OUT}"])
            for i in range(4): c(f"v_not_b32 v{O1R+4*i}, v{V_TAG}")
            assert n >= 5
            if clean:
                assert n >= 6
                c([f"s_lshl_b32 s8, s{S_BR}, 19", f"s_lshl_b32 s10, s{S_HEAD}, 11", "s_or_b32 s8, s8, s10", f"s_lshl_b32 s10, s{S_S}, 9", "s_or_b32 s8, s8, s10",
                   f"s_lshl_b32 s10, s{S_WAVE}, 17", "s_or_b32 s8, s8, s10", f"s_add_u32 s8, s8, {WS_Q}", "v_lshrrev_b32 v83, 5, v0", "v_and_b32 v82, 31, v0", "v_lshlrev_b32 v82, 4, v82",
                   "v_lshl_or_b32 v83, v83, 16, v82", "v_add_u32 v83, s8, v83"])
            c([f"s_cmp_eq_u32 s{S_FOR}, 0", f"s_cselect_b32 s{S_T}, 63, 0"], mark="tail_setup")
            weights(VT)
    cb = combine(1)
    if defer == "s6":
        i = cb.index("s_waitcnt lgkmcnt(0)"); cb = cb[:i] + [f"buffer_store_dwordx4 {ar(96)}, v12, {srd(SRD_WS)}, s{S_P2S} offen sc1"] + cb[i:]
    c(stamp() + cb + stamp(), stores=2 if defer == "s6" else 1, bias=-100)
    S.run()
    wo_younger = len(S.ops) - S.seq["WL3"]
    def poll(nm, loads, regs, tmp, depth, entry, extra=()):
        O.extend(entry + [f"L_retry_{nm}:", "s_mov_b64 exec, vcc"] + giveup(nm) + list(extra) + [f"L_poll_{nm}:"] + loads + [f"s_waitcnt vmcnt({len(loads)*(depth-1)})", f"L_chk_{nm}:"]
                 + check_ops(regs, tmp) + [f"s_cbranch_vccnz L_retry_{nm}", f"L_ok_{nm}:", "s_mov_b64 exec, -1"])
    o1l = o1_(1, lambda o: vr(O1R + o))
    astore = ["s_mov_b64 exec, 0xff", f"buffer_store_dwordx4 {ar(96)}, v12, {srd(SRD_WS)}, s{S_P2S} offen sc1", "s_mov_b64 exec, -1"] if stage2 else []
    if defer and defer != "s6":
        astore = ["s_mov_b32 exec_hi, 0", f"buffer_store_dwordx4 {ar(96)}, v12, {srd(SRD_WS)}, s{S_P2S} offen sc1", "s_mov_b32 exec_hi, -1"]; a_store = defer
    O.extend(flav(o1l, "nt")); A(f"s_waitcnt vmcnt({4 + wo_younger})")
    O.extend(wo_put(1, WOL, WOL + 16))
    cl_ = [f"buffer_store_dwordx4 {vr(240)}, v83, {srd(SRD_WS)}, s{S_XQ} offen sc1", "s_mov_b32 exec_hi, 0", f"buffer_store_dwordx4 {vr(240)}, v7, {srd(SRD_WS)}, 0 offen sc1", "s_mov_b32 exec_hi, -1"]
    if clean == "s7": O.extend(cl_)
    if a_store == "s7": O.extend(astore)
    poll("o1", flav(o1l, "nt"), [O1R + 4 * s for s in range(4)], 80, depth1, ["s_branch L_chk_o1"], extra=[f"s_and_b32 s8, s{S_CNT}, s{S_T}", "s_cbranch_scc0 L_far_o1"] + ([f"s_sleep {sl1}"] if sl1 else []))
    T(["L_far_o1:"] + o1l + ["s_waitcnt vmcnt(0)", "s_branch L_chk_o1"])
    O.extend(stamp())
    op = untag(96, O1R) + outproj(1, 96, 96)
    if a_store == "s8":
        i = op.index("s_waitcnt lgkmcnt(0)"); op = op[:i] + astore + op[i:]
    O.extend(op)
    if a_store == "s9": O.extend(astore)
    if clean == "s9": O.extend(cl_)
    O.extend(stamp())
    A(f"s_cmp_lg_u32 s{S_WAVE}, 0"); A("s_cbranch_scc1 L_fin")
    if stage2: A(f"s_cmp_eq_u32 s{S_BR}, 0"); A("s_cbranch_scc1 L_poll_pa")
    if stage2: T(["L_retry_pa:"] + giveup("pa") + ["L_poll_pa:", p2_(lambda o: vr(RR + o))[0], "s_waitcnt vmcnt(0)"] + check_ops([RR, RR], 80) + ["s_cbranch_vccnz L_retry_pa", "s_branch L_ok_pa"])
    for i in range(4): A(f"v_not_b32 v{P2R+4*i}, v{V_TAG}")
    poll("p2", p2_(lambda o: vr(P2R + o)), [P2R + 4 * i for i in range(4)], 80, depth2, (["s_waitcnt vmcnt(0)"] if w0 else []) + ([f"s_sleep {bo2}"] if bo2 else []) + ["s_branch L_poll_p2"], extra=[f"s_sleep {sl2}"] if sl2 else [])
    O.extend(untag(RR + 8, P2R) + sum4(RR, RR + 8))
    A("L_ok_pa:")
    O.extend([f"v_permlane32_swap_b32 v{RR}, v{RR+2}", f"v_permlane32_swap_b32 v{RR+1}, v{RR+3}", f"v_pk_add_f32 {vr(RR,2)}, {vr(RR,2)}, {vr(RR+2,2)}",
              f"v_permlane16_swap_b32 v{RR}, v{RR+1}", f"v_add_f32 v{RR}, v{RR}, v{RR+1}", f"v_add_f32_dpp v{RR+1}, v{RR}, v{RR} row_ror:8 row_mask:0xf bank_mask:0xf",
              f"v_cvt_pk_bf16_f32 v{RR+1}, v{RR+1}, v{RR+1}", f"buffer_store_short v{RR+1}, v{V_OUT}, {srd(SRD_OUT)}, 0 offen"])
    A("s_cmp_lg_u32 s2, 0"); A("s_cbranch_scc1 L_fin")
    A(f"v_mov_b32 v4, {WS_E}"); A("s_mov_b64 exec, 1"); A(f"buffer_store_dword v{V_TAG}, v4, {srd(SRD_WS)}, 0 offen sc1")
    A("L_fin:")
    if stamps:
        O.extend(stamp())
        A("s_waitcnt lgkmcnt(0)")
        A(f"s_lshl_b32 s8, s2, 4"); A(f"s_add_u32 s8, s8, s{S_WAVE}"); A("s_lshl_b32 s8, s8, 7"); A(f"s_add_u32 s8, s8, {64<<20}")
        A("s_mov_b64 exec, 1"); A("v_mov_b32 v4, 0")
        for i in range(nst[0]):
            A(f"v_mov_b32 v16, s{S_STAMP+2*i}"); A(f"v_mov_b32 v17, s{S_STAMP+2*i+1}")
            A(f"buffer_store_dwordx2 v[16:17], v4, {srd(SRD_WS)}, s8 offen offset:{8*i}"); A("s_nop 1")
    A("L_end:"); A("s_endpgm")
    O.extend(tail_code)
    A("L_code_end:")
    body = finalize(O)
    hdr = HEADER + f"; @launch grid=(256,1,1) block=(256,1,1) lds={LDS_BYTES}\n"
    hdr += '.amdgcn_target "amdgcn-amd-amdhsa--gfx950"\n.text\n' + f".globl {NAME}_kernel\n.p2align 8\n.type {NAME}_kernel,@function\n"
    ftr = f"""
.section .rodata,"a"
.p2align 6
.amdhsa_kernel {NAME}_kernel
  .amdhsa_next_free_vgpr 512
  .amdhsa_next_free_sgpr 102
  .amdhsa_accum_offset 256
  .amdhsa_group_segment_fixed_size 0
  .amdhsa_kernarg_size 104
  .amdhsa_user_sgpr_count 2
  .amdhsa_user_sgpr_kernarg_segment_ptr 1
  .amdhsa_system_sgpr_workgroup_id_x 1
.end_amdhsa_kernel
"""
    return hdr + "\n".join(body) + ftr, nst[0]

if __name__ == "__main__":
    kw = {}
    for a in sys.argv[2:]:
        k, v = a.split("="); kw[k] = eval(v)
    txt, n = gen(**kw)
    open(sys.argv[1], "w").write(txt)
    print(sys.argv[1], "stamps:", n, "lines:", txt.count("\n"))
```
